```python
import torch

def _softmax(x, axis=-1):
    return torch.softmax(x, dim=axis)

def _gelu(x):
    return torch.nn.functional.gelu(x, approximate='tanh')

def _silu(x):
    return torch.nn.functional.silu(x)

def _sigmoid(x):
    return torch.sigmoid(x)

def _layernorm(x, axis=-1, eps=1e-05):
    m = x.mean(dim=axis, keepdim=True)
    v = x.var(dim=axis, keepdim=True, unbiased=False)
    return (x - m) / torch.sqrt(v + eps)

def _scatter_add(tgt, idx, src, axis=0):
    return tgt.clone().index_add_(axis, idx, src)

def _segment_sum(src, seg, n):
    out = torch.zeros((n,) + src.shape[1:], dtype=src.dtype)
    return out.index_add_(0, seg, src)

def _pad(x, pw):
    flat = tuple((v for pair in reversed(pw) for v in pair))
    return torch.nn.functional.pad(x, flat)
kernel_name = 'recurrent_scan__memory_aug_recurrent_mem_tr__glu_gated_bilinear__prompt'

def setup_inputs():

    _w = lambda a: (lambda t: t.to(torch.bfloat16) if t.is_floating_point() else t)(torch.as_tensor(a))

    def _A_setup():
        B, S, Dm = (1, 2048, 640)
        H, Dh = (32, 192)
        M, seg = (8, 32)
        seg = min(seg, S)
        S = S // seg * seg
        return {'x': _w((lambda *s: torch.randn(*s, dtype=torch.bfloat16) * 0.1)(B, S, Dm)), 'mem0': _w((lambda *s: torch.randn(*s, dtype=torch.bfloat16) * 1.6)(B, M, Dm)), 'Wq': _w((lambda *s: torch.randn(*s, dtype=torch.bfloat16) * 0.8)(Dm, H, Dh) * Dm ** (-0.5)), 'Wk': _w((lambda *s: torch.randn(*s, dtype=torch.bfloat16) * 0.8)(Dm, H, Dh) * Dm ** (-0.5)), 'Wv': _w((lambda *s: torch.randn(*s, dtype=torch.bfloat16) * 1.6)(Dm, H, Dh) * Dm ** (-0.5)), 'Wo': _w((lambda *s: torch.randn(*s, dtype=torch.bfloat16) * 1.6)(H, Dh, Dm) * (H * Dh) ** (-0.5)), 'seg_len': seg}
    _A_in = _A_setup()

    def _B_setup():
        B, S, D, F = (1, 2048, 640, 1536)
        return {'x': _w((lambda *s: torch.randn(*s, dtype=torch.bfloat16) * 0.1)(B, S, D)), 'w_gate': _w((lambda *s: torch.randn(*s, dtype=torch.bfloat16) * 0.4)(D, F) * D ** (-0.5)), 'w_up': _w((lambda *s: torch.randn(*s, dtype=torch.bfloat16) * 0.4)(D, F) * D ** (-0.5)), 'w_down': _w((lambda *s: torch.randn(*s, dtype=torch.bfloat16) * 0.4)(F, D) * F ** (-0.5))}
    _B_in = _B_setup()
    return {'A_x': _A_in['x'], 'A_mem0': _A_in['mem0'], 'A_Wq': _A_in['Wq'], 'A_Wk': _A_in['Wk'], 'A_Wv': _A_in['Wv'], 'A_Wo': _A_in['Wo'], 'A_seg_len': _A_in['seg_len'], 'B_x': _B_in['x'], 'B_w_gate': _B_in['w_gate'], 'B_w_up': _B_in['w_up'], 'B_w_down': _B_in['w_down']}

def reference(A_x, A_mem0, A_Wq, A_Wk, A_Wv, A_Wo, A_seg_len, B_x, B_w_gate, B_w_up, B_w_down):

    def _A_ref(x, mem0, Wq, Wk, Wv, Wo, seg_len):
        B, S, Dm = x.shape
        H, Dh = (Wq.shape[1], Wq.shape[2])
        M = mem0.shape[1]
        scale = Dh ** (-0.5)
        n_seg = S // seg_len
        L = M + seg_len
        idx = torch.arange(L)
        mask = (idx[:, None] < M) | (idx[:, None] >= idx[None, :])
        mem = mem0
        outs = []
        for s in range(n_seg):
            xs = x[:, s * seg_len:(s + 1) * seg_len, :].clone()
            h = torch.concatenate([mem, xs], axis=1)
            q = torch.einsum('btd,dhe->bhte', h, Wq)
            k = torch.einsum('btd,dhe->bhte', h, Wk)
            v = torch.einsum('btd,dhe->bhte', h, Wv)
            scores = torch.einsum('bhqe,bhke->bhqk', q, k) * scale
            scores = torch.where(mask[None, None], scores, -1000000000.0)
            p = _softmax(scores, axis=-1)
            o = torch.einsum('bhqk,bhke->bhqe', p, v)
            o = torch.einsum('bhte,hed->btd', o, Wo)
            mem = o[:, :M, :].clone()
            outs.append(o[:, M:, :])
        return torch.concatenate(outs, axis=1)

    def _B_ref(x, w_gate, w_up, w_down):
        g = torch.einsum('bsd,df->bsf', x, w_gate)
        u = torch.einsum('bsd,df->bsf', x, w_up)
        h = g * u
        return torch.einsum('bsf,fd->bsd', h, w_down)
    x = A_x
    xn = _layernorm(x, axis=-1)
    s = _A_ref(xn, A_mem0, A_Wq, A_Wk, A_Wv, A_Wo, A_seg_len)
    g = _silu(_B_ref(xn, B_w_gate, B_w_up, B_w_down))
    return x + s * g
```

```python
from common import *
from chain import st_intra, WSR, f32hex, C_EXP
import math

WR = f"s[{SRD_W}:{SRD_W+3}]"
FLAG_SPIN = 4000000

def wave_sum(a, v, t):
    for sh in (1, 2, 4, 8):
        a("s_nop 1")
        a(f"v_add_f32_dpp v{v}, v{v}, v{v} row_ror:{sh} row_mask:0xf bank_mask:0xf")
    for op in ("v_permlane16_swap_b32", "v_permlane32_swap_b32"):
        a(f"v_mov_b32 v{t}, v{v}")
        a("s_nop 1")
        a(f"{op} v{v}, v{t}")
        a(f"v_add_f32 v{v}, v{v}, v{t}")

def round_bf16(a, d, s):
    a(f"v_cvt_pk_bf16_f32 v{d}, v{s}, v{s}")
    a(f"v_and_b32 v{d}, 0xffff0000, v{d}")

def gen_ln(a):
    a.c("==== layernorm of one row per wave")
    srd(a, SRD_M, S_X, 2048*640*2)
    MR_ = f"s[{SRD_M}:{SRD_M+3}]"
    a(f"s_lshl_b32 s63, s2, 3")
    a(f"s_add_u32 s63, s63, s{S_WAVE}")
    a(f"s_mul_i32 s64, s63, 1280")
    a(f"v_lshlrev_b32 v2, 4, v1")
    a(f"v_add_u32 v3, 1024, v2")
    a(f"v_mov_b32 v4, {OOB}")
    a(f"v_cmp_gt_u32 s[66:67], 16, v1")
    a("s_nop 1")
    a(f"v_cndmask_b32 v3, v4, v3, s[66:67]")
    a(f"buffer_load_dwordx4 v[8:11], v2, {MR_}, s64 offen")
    a(f"buffer_load_dwordx4 v[12:15], v3, {MR_}, s64 offen")
    a(f"v_lshrrev_b32 v5, 2, v1")
    a(f"v_lshlrev_b32 v5, 10, v5")
    a(f"v_and_b32 v6, 3, v1")
    a(f"v_lshlrev_b32 v6, 8, v6")
    a(f"v_add_u32 v5, v5, v6")
    a(f"v_add_u32 v6, {16*1024}, v5")
    a(f"v_cndmask_b32 v6, v4, v6, s[66:67]")
    a(f"s_lshr_b32 s64, s63, 4")
    a(f"s_mul_i32 s64, s64, {20*1024}")
    a(f"s_and_b32 s65, s63, 15")
    a(f"s_lshl_b32 s65, s65, 4")
    a(f"s_add_u32 s64, s64, s65")
    if XN: a(f"s_add_u32 s64, s64, {XN}")
    a("s_waitcnt vmcnt(0)")
    X = 16
    for k in range(8):
        a(f"v_lshlrev_b32 v{X+2*k}, 16, v{8+k}")
        a(f"v_and_b32 v{X+2*k+1}, 0xffff0000, v{8+k}")
    a(f"v_add_f32 v32, v{X}, v{X+1}")
    for k in range(2, 16): a(f"v_add_f32 v32, v32, v{X+k}")
    wave_sum(a, 32, 33)
    a(f"v_mul_f32 v32, {f32hex(1.0/640)}, v32")
    for k in range(16): a(f"v_sub_f32 v{36+k}, v{X+k}, v32")
    a(f"v_mul_f32 v34, v36, v36")
    for k in range(1, 8): a(f"v_fmac_f32 v34, v{36+k}, v{36+k}")
    a(f"v_mul_f32 v35, v44, v44")
    for k in range(9, 16): a(f"v_fmac_f32 v35, v{36+k}, v{36+k}")
    a(f"v_cndmask_b32 v35, 0, v35, s[66:67]")
    a(f"v_add_f32 v34, v34, v35")
    wave_sum(a, 34, 33)
    a(f"v_mul_f32 v34, {f32hex(1.0/640)}, v34")
    round_bf16(a, 34, 34)
    a(f"v_add_f32 v34, {f32hex(1e-5)}, v34")
    round_bf16(a, 34, 34)
    a(f"v_sqrt_f32 v34, v34")
    a("s_nop 0")
    round_bf16(a, 34, 34)
    a(f"v_rcp_f32 v35, v34")
    round_bf16(a, 32, 32)
    for k in range(16): a(f"v_sub_f32 v{36+k}, v{X+k}, v32")
    for k in range(8):
        a(f"v_cvt_pk_bf16_f32 v{8+k}, v{36+2*k}, v{36+2*k+1}")
    for k in range(8):
        a(f"v_lshlrev_b32 v{X+2*k}, 16, v{8+k}")
        a(f"v_and_b32 v{X+2*k+1}, 0xffff0000, v{8+k}")
    for k in range(16):
        a(f"v_mul_f32 v{36+k}, v{X+k}, v35")
        a(f"v_fma_f32 v{X+k}, -v{36+k}, v34, v{X+k}")
        a(f"v_fmac_f32 v{36+k}, v{X+k}, v35")
    for k in range(8):
        a(f"v_cvt_pk_bf16_f32 v{8+k}, v{36+2*k}, v{36+2*k+1}")
    a(f"buffer_store_dwordx4 v[8:11], v5, {WSR}, s64 offen sc1")
    a(f"buffer_store_dwordx4 v[12:15], v6, {WSR}, s64 offen sc1")

def flag_init(a, soff):
    l = a.newlabel("fi")
    a(f"s_cmp_eq_u32 s{S_WAVE}, 0")
    a(f"s_cbranch_scc0 {l}")
    a(f"v_mov_b32 v2, 0")
    a(f"buffer_store_dword v2, v2, {WSR}, s{soff} offen sc1")
    a.label(l)

def flag_set(a, soff, sval, intra, vt, wave=0):
    l = a.newlabel("fs")
    a(f"s_cmp_eq_u32 s{S_WAVE}, {wave}")
    a(f"s_cbranch_scc0 {l}")
    a(f"v_mov_b32 v{vt}, 0")
    a(f"v_mov_b32 v{vt+1}, s{sval}")
    ins = f"buffer_store_dword v{vt+1}, v{vt}, {WSR}, s{soff} offen"
    if intra: st_intra(a, [ins])
    else: a(ins + " sc1")
    a.label(l)

def flag_wait(a, voff, sneed, scache, vt, sleep=2, ahead=3):
    l = a.newlabel("fw"); d = a.newlabel("fwd")
    a(f"s_cmp_ge_u32 s{scache}, s{sneed}")
    a(f"s_cbranch_scc1 {d}")
    a(f"s_mov_b32 s76, {FLAG_SPIN}")
    a.label(l)
    a(f"buffer_load_dword v{vt}, v{voff}, {WSR}, 0 offen sc1")
    a(f"s_sub_u32 s76, s76, 1")
    a(f"s_cbranch_scc1 {d}")
    a("s_waitcnt vmcnt(0)")
    a(f"v_cmp_gt_u32 vcc, s{sneed}, v{vt}")
    l2 = a.newlabel("fwo")
    a(f"s_cbranch_vccz {l2}")
    if sleep: a(f"s_sleep {sleep}")
    a(f"s_branch {l}")
    a.label(l2)
    if ahead:
        a(f"s_add_u32 s76, s{sneed}, {ahead}")
        a(f"v_cmp_gt_u32 vcc, s76, v{vt}")
        a(f"s_cmp_eq_u64 vcc, 0")
        a(f"s_cselect_b32 s{scache}, s76, s{sneed}")
    else:
        a(f"s_mov_b32 s{scache}, s{sneed}")
    a.label(d)

def stage_weights(a, sptr, nbytes, RS, scol, R, NCH, batch_rows, nbuf, reader, vb=2):
    P = NCH // math.gcd(NCH, 64)
    RG = P*64 // NCH
    groups = batch_rows // RG
    assert batch_rows % RG == 0 and groups % 8 == 0 and R % batch_rows == 0
    gpw = groups // 8
    nb = R // batch_rows
    bbytes = batch_rows*NCH*16
    assert nbuf*bbytes <= 163840
    srd(a, SRD_W, sptr, nbytes)
    M = (65536 + NCH - 1)//NCH
    t0, t1 = vb+P, vb+P+1
    for k in range(P):
        for i in range(64*k, 64*k+64): assert (i*M) >> 16 == i // NCH
        a(f"v_add_u32 v{t0}, {64*k}, v1")
        a(f"v_mul_u32_u24 v{t1}, {M}, v{t0}")
        a(f"v_lshrrev_b32 v{t1}, 16, v{t1}")
        a(f"v_mul_u32_u24 v{vb+k}, {RS - NCH*16}, v{t1}")
        a(f"v_lshlrev_b32 v{t0}, 4, v{t0}")
        a(f"v_add_u32 v{vb+k}, v{vb+k}, v{t0}")
    def issue(b):
        a(f"s_mul_i32 s63, s{S_WAVE}, {P*1024}")
        a(f"s_add_u32 s63, s63, {(b % nbuf)*bbytes}")
        a(f"s_mul_i32 s64, s{S_WAVE}, {RG*RS}")
        a(f"s_add_u32 s64, s64, s{scol}")
        a(f"s_add_u32 s64, s64, {b*batch_rows*RS}")
        for q in range(gpw):
            for k in range(P):
                a(f"s_mov_b32 m0, s63")
                a(f"s_add_u32 s63, s63, {1024 if k < P-1 else 1024 + 7*P*1024}")
                a(f"buffer_load_dwordx4 v{vb+k}, {WR}, s64 offen lds")
            a(f"s_add_u32 s64, s64, {8*RG*RS}")
    per = gpw*P
    for b in range(min(nbuf, nb)): issue(b)
    for b in range(nb):
        out = (min(nb, b+nbuf) - b - 1)*per
        a(f"s_waitcnt vmcnt({min(out, 63)})")
        a("s_barrier")
        reader(b*batch_rows, (b % nbuf)*bbytes)
        a("s_waitcnt lgkmcnt(0)")
        a("s_barrier")
        if b + nbuf < nb: issue(b+nbuf)

def tr_base(a, vd, pitch, rowg, colq, vt):
    a(f"v_lshrrev_b32 v{vt}, 4, v1")
    a(f"v_mul_u32_u24 v{vd}, {rowg*pitch}, v{vt}")
    a(f"v_bfe_u32 v{vt}, v1, 2, 2")
    a(f"v_mul_u32_u24 v{vt}, {pitch}, v{vt}")
    a(f"v_add_u32 v{vd}, v{vd}, v{vt}")
    a(f"v_and_b32 v{vt}, 3, v1")
    a(f"v_mul_u32_u24 v{vt}, {colq}, v{vt}")
    a(f"v_add_u32 v{vd}, v{vd}, v{vt}")

def make_reader(a, vaddr, vtmp, classes, pitch, batch_rows, rowh):
    def reader(row0, lbase):
        for (skip, tiles) in classes:
            l = a.newlabel("rd")
            skip(l)
            a(f"v_add_u32 v{vtmp}, {lbase}, v{vaddr}")
            n = 0
            for ksl in range(batch_rows//32):
                ks = row0//32 + ksl
                for (wb, co) in tiles:
                    for h in range(2):
                        off = (32*ksl + rowh*h)*pitch + co
                        assert off < 65536
                        d = wb + ks*4 + 2*h
                        a(f"ds_read_b64_tr_b16 v[{d}:{d+1}], v{vtmp} offset:{off}")
                        n += 1
                        if n % 8 == 0: a("s_waitcnt lgkmcnt(6)")
            a.label(l)
    return reader

def skip_if_small(a):
    def f(l):
        a(f"s_cmp_lt_u32 s{S_WAVE}, 4"); a(f"s_cbranch_scc0 {l}")
    return f
def skip_if_big(a):
    def f(l):
        a(f"s_cmp_lt_u32 s{S_WAVE}, 4"); a(f"s_cbranch_scc1 {l}")
    return f

def gemm_unit(a, KS, tiles, accs, FR, NF, vlds, lds_off0, w_is_A):
    def rd(ks): a(f"ds_read_b128 v[{FR+4*(ks%NF)}:{FR+4*(ks%NF)+3}], v{vlds} offset:{lds_off0+ks*1024}")
    for ks in range(min(NF, KS)): rd(ks)
    for ks in range(KS):
        outstanding = min(KS, ks+NF) - ks - 1
        a(f"s_waitcnt lgkmcnt({outstanding})")
        f = f"v[{FR+4*(ks%NF)}:{FR+4*(ks%NF)+3}]"
        for t, acc in zip(tiles, accs):
            w = f"v[{t+4*ks}:{t+4*ks+3}]"
            c = "0" if ks == 0 else f"v[{acc}:{acc+3}]"
            A_, B_ = (w, f) if w_is_A else (f, w)
            a(f"v_mfma_f32_16x16x32_bf16 v[{acc}:{acc+3}], {A_}, {B_}, {c}")
        if ks + NF < KS: rd(ks+NF)

FR, NF, ACC = 16, 8, 48
S_FLAG = 8
S_U = 73

def own_flag_intra(a):
    a(f"s_lshl_b32 s{S_FLAG}, s{S_GRP}, 8")
    a(f"s_lshl_b32 s63, s{S_IDX}, 2")
    a(f"s_add_u32 s{S_FLAG}, s{S_FLAG}, s63")
    a(f"s_add_u32 s{S_FLAG}, s{S_FLAG}, {FLI}")

def dma_frags(a, n_per_wave, ssrc, sdst, stride_waves=True, flags="sc1"):
    a(f"s_lshl_b32 s63, s{S_WAVE}, 10")
    a(f"s_add_u32 s64, s63, s{ssrc}")
    a(f"s_add_u32 s63, s63, s{sdst}")
    for k in range(n_per_wave):
        a(f"s_mov_b32 m0, s63")
        a(f"s_add_u32 s63, s63, 8192")
        a(f"buffer_load_dwordx4 v7, {WSR}, s64 offen {flags} lds")
        a(f"s_add_u32 s64, s64, 8192")

def proj_weights(a, sptr, ktype, shead):
    W0, W1 = 96, 176
    a(f"s_mul_i32 s62, s{shead}, 384")
    tr_base(a, 10, 384, 8, 16 if ktype else 8, 11)
    l1 = a.newlabel("pw"); l2 = a.newlabel("pw")
    a(f"s_cmp_lt_u32 s{S_WAVE}, 4")
    a(f"s_cbranch_scc0 {l1}")
    a(f"s_lshl_b32 s63, s{S_WAVE}, 6")
    a(f"s_branch {l2}")
    a.label(l1)
    a(f"s_sub_u32 s64, s{S_WAVE}, 4")
    if ktype:
        a(f"s_lshr_b32 s63, s64, 1")
        a(f"s_lshl_b32 s63, s63, 6")
        a(f"s_and_b32 s64, s64, 1")
        a(f"s_lshl_b32 s64, s64, 3")
        a(f"s_add_u32 s63, s63, s64")
    else:
        a(f"s_lshl_b32 s63, s64, 5")
    a(f"s_add_u32 s63, s63, 256")
    a.label(l2)
    a(f"v_add_u32 v10, s63, v10")
    rd = make_reader(a, 10, 11, [(skip_if_small(a), [(W0, 0), (W1, 8 if ktype else 32)]), (skip_if_big(a), [(W0, 0)])], 384, 128, 4)
    stage_weights(a, sptr, 640*6144*2, 12288, 62, 640, 24, 128, 3, rd)

def xn_loop(a, cfg, body_big, body_small, intra, pre_dma=None, nseg=64):
    a(f"v_lshlrev_b32 v7, 4, v1")
    a(f"s_mov_b32 s{S_U}, 0")
    a(f"s_mov_b32 s70, {XN}")
    a(f"s_mov_b32 s71, 0")
    dma_frags(a, 5, 70, 71)
    top = a.newlabel("xl"); sm = a.newlabel("xs"); jn = a.newlabel("xj")
    a.label(top)
    a("s_waitcnt vmcnt(0)")
    a("s_barrier")
    flag_set(a, S_FLAG, S_U, intra, 2)
    a(f"s_add_u32 s72, s{S_U}, 1")
    a(f"s_min_u32 s72, s72, {nseg-1}")
    a(f"s_mul_i32 s70, s72, {40*1024}")
    if XN: a(f"s_add_u32 s70, s70, {XN}")
    a(f"v_add_u32 v8, s71, v7")
    a(f"s_xor_b32 s71, s71, {40*1024}")
    if pre_dma: pre_dma()
    dma_frags(a, 5, 70, 71)
    a(f"s_cmp_lt_u32 s{S_WAVE}, 4")
    a(f"s_cbranch_scc0 {sm}")
    body_big()
    a(f"s_branch {jn}")
    a.label(sm)
    body_small()
    a.label(jn)
    return top

def loop_end(a, top, n, intra):
    a(f"s_add_u32 s{S_U}, s{S_U}, 1")
    a(f"s_cmp_lt_u32 s{S_U}, {n}")
    a(f"s_cbranch_scc1 {top}")
    a("s_waitcnt vmcnt(0)")
    a("s_barrier")
    flag_set(a, S_FLAG, S_U, intra, 2)
    a("s_endpgm")

def cvt4(a, d, s0, s1):
    a(f"v_cvt_pk_bf16_f32 v{d}, v{s0}, v{s0+1}")
    a(f"v_cvt_pk_bf16_f32 v{d+1}, v{s0+2}, v{s0+3}")
    a(f"v_cvt_pk_bf16_f32 v{d+2}, v{s1}, v{s1+1}")
    a(f"v_cvt_pk_bf16_f32 v{d+3}, v{s1+2}, v{s1+3}")

def gen_kv_pre(a, cfg, isV):
    a(f"s_sub_u32 s60, s{S_IDX}, {16 if isV else 12}")
    a(f"s_lshl_b32 s61, s{S_GRP}, 2")
    a(f"s_add_u32 s61, s61, s60")
    proj_weights(a, S_WV if isV else S_WK, 0 if isV else 1, 61)

def gen_kv_main(a, cfg, isV):
    W0, W1 = 96, 176
    O_ = 64
    a(f"v_lshlrev_b32 v7, 4, v1")
    a(f"s_mul_i32 s63, s61, {12*1024}")
    a(f"s_add_u32 s63, s63, {VF if isV else KF}")
    l1 = a.newlabel("kv"); l2 = a.newlabel("kv")
    a(f"s_cmp_lt_u32 s{S_WAVE}, 4")
    a(f"s_cbranch_scc0 {l1}")
    a(f"s_lshl_b32 s64, s{S_WAVE}, {11 if isV else 10}")
    a(f"s_branch {l2}")
    a.label(l1)
    a(f"s_sub_u32 s65, s{S_WAVE}, 4")
    if isV:
        a(f"s_add_u32 s64, s65, 8")
        a(f"s_lshl_b32 s64, s64, 10")
    else:
        a(f"s_lshr_b32 s64, s65, 1")
        a(f"s_add_u32 s64, s64, 4")
        a(f"s_lshl_b32 s64, s64, 10")
        a(f"s_and_b32 s65, s65, 1")
        a(f"s_lshl_b32 s65, s65, 3")
        a(f"s_add_u32 s64, s64, s65")
    a.label(l2)
    a(f"s_add_u32 s63, s63, s64")
    a(f"v_add_u32 v9, s63, v7")
    a(f"v_add_u32 v10, {6*1024}, v9")
    def big():
        a(f"s_mul_i32 s74, s{S_U}, {32*12*1024}")
        for tt in range(2):
            gemm_unit(a, 20, [W0, W1], [ACC+8*tt, ACC+8*tt+4], FR, NF, 8, tt*20480, not isV)
        a("s_nop 7")
        if isV:
            cvt4(a, O_, ACC, ACC+8); cvt4(a, O_+4, ACC+4, ACC+12)
            st_intra(a, [f"buffer_store_dwordx4 v[{O_}:{O_+3}], v9, {WSR}, s74 offen",
                         f"buffer_store_dwordx4 v[{O_+4}:{O_+7}], v9, {WSR}, s74 offen offset:1024"])
        else:
            cvt4(a, O_, ACC, ACC+4); cvt4(a, O_+4, ACC+8, ACC+12)
            st_intra(a, [f"buffer_store_dwordx4 v[{O_}:{O_+3}], v9, {WSR}, s74 offen",
                         f"buffer_store_dwordx4 v[{O_+4}:{O_+7}], v10, {WSR}, s74 offen"])
    def small():
        a(f"s_mul_i32 s74, s{S_U}, {32*12*1024}")
        for tt in range(2):
            gemm_unit(a, 20, [W0], [ACC+4*tt], FR, NF, 8, tt*20480, not isV)
        a("s_nop 7")
        cvt4(a, O_, ACC, ACC+4)
        if isV:
            st_intra(a, [f"buffer_store_dwordx4 v[{O_}:{O_+3}], v9, {WSR}, s74 offen"])
        else:
            st_intra(a, [f"buffer_store_dwordx2 v[{O_}:{O_+1}], v9, {WSR}, s74 offen",
                         f"buffer_store_dwordx2 v[{O_+2}:{O_+3}], v10, {WSR}, s74 offen"])
    pre = None
    if cfg.get("lead"):
        a(f"s_lshl_b32 s63, s{S_GRP}, 8")
        a(f"s_mul_i32 s64, s60, 12")
        a(f"s_add_u32 s63, s63, s64")
        a(f"s_add_u32 s63, s63, {FLI}")
        a(f"v_mov_b32 v11, s63")
        a(f"s_mov_b32 s77, 0")
        def pre():
            a(f"s_max_u32 s75, s{S_U}, {cfg['lead']}")
            a(f"s_sub_u32 s75, s75, {cfg['lead']}")
            flag_wait(a, 11, 75, 77, 2, sleep=8, ahead=0)
    top = xn_loop(a, cfg, big, small, True, pre)
    loop_end(a, top, 64, True)

def gen_f1_pre(a, cfg):
    W0, W1 = 96, 176
    a(f"s_lshl_b32 s62, s60, 8")
    for (ptr, wb) in ((S_WG, W0), (S_WU, W1)):
        tr_base(a, 10, 256, 8, 8, 11)
        a(f"s_lshl_b32 s63, s{S_WAVE}, 5")
        a(f"v_add_u32 v10, s63, v10")
        rd = make_reader(a, 10, 11, [(lambda l: None, [(wb, 0)])], 256, 160, 4)
        stage_weights(a, ptr, 640*1536*2, 3072, 62, 640, 16, 160, 4, rd)

def gen_f1_main(a, cfg):
    W0, W1 = 96, 176
    O_ = 64
    a(f"v_lshlrev_b32 v7, 4, v1")
    a(f"s_lshl_b32 s63, s60, 2")
    a(f"s_lshr_b32 s64, s{S_WAVE}, 1")
    a(f"s_add_u32 s63, s63, s64")
    a(f"s_lshl_b32 s63, s63, 10")
    a(f"s_and_b32 s64, s{S_WAVE}, 1")
    a(f"s_lshl_b32 s64, s64, 3")
    a(f"s_add_u32 s63, s63, s64")
    a(f"s_add_u32 s63, s63, {HF}")
    a(f"v_add_u32 v9, s63, v7")
    a(f"v_add_u32 v10, {48*1024}, v9")
    def body():
        a(f"s_mul_i32 s74, s{S_U}, {96*1024}")
        for tt in range(2):
            gemm_unit(a, 20, [W0, W1], [ACC+8*tt, ACC+8*tt+4], FR, NF, 8, tt*20480, True)
        a("s_nop 7")
        for k in range(16): round_bf16(a, ACC+k, ACC+k)
        for tt in range(2):
            for r in range(4): a(f"v_mul_f32 v{ACC+8*tt+r}, v{ACC+8*tt+r}, v{ACC+8*tt+4+r}")
        cvt4(a, O_, ACC, ACC+8)
        a(f"buffer_store_dwordx2 v[{O_}:{O_+1}], v9, {WSR}, s74 offen sc1")
        a(f"buffer_store_dwordx2 v[{O_+2}:{O_+3}], v10, {WSR}, s74 offen sc1")
    top = xn_loop(a, cfg, body, body, False)
    loop_end(a, top, 64, False)

def gen_f2_pre(a, cfg):
    a(f"s_cmp_ge_u32 s60, 5")
    a(f"s_cselect_b32 s9, 1, 0")
    a(f"s_mul_i32 s61, s9, 5")
    a(f"s_sub_u32 s61, s60, s61")
    a(f"s_lshl_b32 s62, s61, 8")
    tr_base(a, 10, 256, 4, 8, 11)
    a(f"s_lshl_b32 s63, s{S_WAVE}, 5")
    a(f"v_add_u32 v10, s63, v10")
    rd = make_reader(a, 10, 11, [(lambda l: None, [(64, 0)])], 256, 192, 16)
    stage_weights(a, S_WD, 1536*640*2, 1280, 62, 1536, 16, 192, 3, rd)

def gen_f2_main(a, cfg):
    a(f"v_lshlrev_b32 v7, 4, v1")
    a(f"v_and_b32 v9, 15, v1")
    a(f"v_mul_u32_u24 v9, 1280, v9")
    a(f"v_lshrrev_b32 v10, 4, v1")
    a(f"v_lshlrev_b32 v10, 3, v10")
    a(f"v_add_u32 v9, v9, v10")
    a(f"s_lshl_b32 s63, s{S_WAVE}, 5")
    a(f"s_add_u32 s63, s63, s62")
    a(f"s_add_u32 s63, s63, {GB}")
    a(f"v_add_u32 v9, s63, v9")
    a(f"v_min_u32 v11, 11, v1")
    a(f"v_lshlrev_b32 v11, 2, v11")
    a(f"v_add_u32 v11, {FLX + 256}, v11")
    a(f"s_mov_b32 s77, 0")
    def tile_of(sd, su):
        a(f"s_lshr_b32 s75, s{su}, 1")
        a(f"s_lshl_b32 s75, s75, 1")
        a(f"s_add_u32 s75, s75, s9")
        a(f"s_lshl_b32 s{sd}, s75, 1")
        a(f"s_and_b32 s63, s{su}, 1")
        a(f"s_add_u32 s{sd}, s{sd}, s63")
    def fetch(su):
        tile_of(70, su)
        a(f"s_add_u32 s75, s75, 1")
        if not cfg.get("nowait"): flag_wait(a, 11, 75, 77, 12)
        a(f"s_mul_i32 s70, s70, {48*1024}")
        a(f"s_add_u32 s70, s70, {HF}")
        dma_frags(a, 6, 70, 71)
    a(f"s_mov_b32 s{S_U}, 0")
    a(f"s_mov_b32 s71, 0")
    fetch(S_U)
    top = a.newlabel("f2")
    a.label(top)
    a("s_waitcnt vmcnt(0)")
    a("s_barrier")
    a(f"s_lshr_b32 s78, s{S_U}, 1")
    a(f"s_lshl_b32 s78, s78, 1")
    a(f"s_add_u32 s78, s78, s9")
    flag_set(a, S_FLAG, 78, False, 2)
    a(f"v_add_u32 v8, s71, v7")
    a(f"s_xor_b32 s71, s71, {48*1024}")
    a(f"s_add_u32 s72, s{S_U}, 1")
    a(f"s_min_u32 s72, s72, 63")
    fetch(72)
    tile_of(74, S_U)
    a(f"s_mul_i32 s74, s74, {16*1280}")
    gemm_unit(a, 48, [64], [ACC], FR, NF, 8, 0, True)
    a("s_nop 7")
    for r in range(4):
        y, t = ACC+r, ACC+4+r
        round_bf16(a, y, y)
        a(f"v_mul_f32 v{t}, {f32hex(-math.log2(math.e))}, v{y}")
        a(f"v_exp_f32 v{t}, v{t}")
        a("s_nop 0")
        a(f"v_add_f32 v{t}, 1.0, v{t}")
        a(f"v_rcp_f32 v{t}, v{t}")
        a("s_nop 0")
        a(f"v_mul_f32 v{y}, v{y}, v{t}")
    a(f"v_cvt_pk_bf16_f32 v{ACC+8}, v{ACC}, v{ACC+1}")
    a(f"v_cvt_pk_bf16_f32 v{ACC+9}, v{ACC+2}, v{ACC+3}")
    a(f"buffer_store_dwordx2 v[{ACC+8}:{ACC+9}], v9, {WSR}, s74 offen sc1")
    a(f"s_add_u32 s{S_U}, s{S_U}, 1")
    a(f"s_cmp_lt_u32 s{S_U}, 64")
    a(f"s_cbranch_scc1 {top}")
    a("s_waitcnt vmcnt(0)")
    a("s_barrier")
    a(f"s_mov_b32 s78, 66")
    flag_set(a, S_FLAG, 78, False, 2)
    a("s_endpgm")

LQ_Q = 81920
LQ_K = LQ_Q + 12288
LQ_V = LQ_K + 12288
LQ_KM = LQ_V + 12288
LQ_VM = LQ_KM + 6144

def gen_q_pre(a, cfg):
    a(f"s_sub_u32 s60, s{S_IDX}, 20")
    a(f"s_lshl_b32 s61, s{S_GRP}, 2")
    a(f"s_add_u32 s61, s61, s60")
    proj_weights(a, S_WQ, 1, 61)

def gen_q_main(a, cfg):
    W0, W1 = 96, 176
    O_ = 64
    a(f"v_lshlrev_b32 v7, 4, v1")
    l1 = a.newlabel("q"); l2 = a.newlabel("q")
    a(f"s_cmp_lt_u32 s{S_WAVE}, 4")
    a(f"s_cbranch_scc0 {l1}")
    a(f"s_lshl_b32 s64, s{S_WAVE}, 10")
    a(f"s_branch {l2}")
    a.label(l1)
    a(f"s_sub_u32 s65, s{S_WAVE}, 4")
    a(f"s_lshr_b32 s64, s65, 1")
    a(f"s_add_u32 s64, s64, 4")
    a(f"s_lshl_b32 s64, s64, 10")
    a(f"s_and_b32 s65, s65, 1")
    a(f"s_lshl_b32 s65, s65, 3")
    a(f"s_add_u32 s64, s64, s65")
    a.label(l2)
    a(f"s_add_u32 s64, s64, {LQ_Q}")
    a(f"v_add_u32 v9, s64, v7")
    a(f"s_lshl_b32 s63, s{S_GRP}, 8")
    a(f"s_add_u32 s63, s63, {FLI}")
    a(f"s_lshl_b32 s64, s60, 2")
    a(f"s_add_u32 s64, s64, s63")
    a(f"v_min_u32 v10, 1, v1")
    a(f"v_lshlrev_b32 v10, 4, v10")
    a(f"v_add_u32 v10, 48, v10")
    a(f"v_add_u32 v10, s64, v10")
    a(f"s_mul_i32 s64, s60, 12")
    a(f"s_add_u32 s64, s64, s63")
    a(f"v_min_u32 v11, 2, v1")
    a(f"v_lshlrev_b32 v11, 2, v11")
    a(f"v_add_u32 v11, s64, v11")
    a(f"s_mov_b32 s77, 0")
    a(f"s_mov_b32 s78, 0")
    a(f"s_and_b32 s79, s{S_WAVE}, 1")
    a(f"s_lshr_b32 s80, s{S_WAVE}, 1")
    a(f"v_lshrrev_b32 v12, 4, v1")
    a(f"v_lshlrev_b32 v12, 2, v12")
    a(f"v_and_b32 v13, 15, v1")
    for r in range(4):
        a(f"v_add_u32 v14, {r}, v12")
        a(f"v_cmp_gt_u32 s[{82+2*r}:{83+2*r}], v14, v13")
    a(f"s_mul_i32 s63, s79, 6144")
    a(f"s_add_u32 s63, s63, {LQ_Q}")
    a(f"v_add_u32 v12, s63, v7")
    a(f"s_lshl_b32 s63, s80, 12")
    a(f"s_add_u32 s63, s63, {LQ_V}")
    a(f"v_add_u32 v13, s63, v7")
    a(f"s_lshl_b32 s63, s80, 10")
    a(f"s_add_u32 s63, s63, {LQ_VM}")
    a(f"v_lshlrev_b32 v14, 2, v1")
    a(f"v_add_u32 v14, s63, v14")
    a(f"s_lshl_b32 s63, s79, 5")
    a(f"s_add_u32 s63, s63, s61")
    a(f"s_mul_i32 s63, s63, 6144")
    a(f"s_lshl_b32 s64, s80, 11")
    a(f"s_add_u32 s63, s63, s64")
    a(f"s_add_u32 s63, s63, {OF}")
    a(f"v_add_u32 v15, s63, v7")
    a(f"v_add_u32 v6, {LQ_K}, v7")
    a(f"s_mov_b32 s81, {f32hex(C_EXP)}")
    def pre_dma():
        a(f"s_add_u32 s75, s{S_U}, 1")
        if not cfg.get("nowait"): flag_wait(a, 10, 75, 77, 2)
        a(f"s_lshl_b32 s74, s{S_U}, 5")
        a(f"s_add_u32 s74, s74, s61")
        a(f"s_mul_i32 s74, s74, 12288")
        for k in range(3):
            a(f"s_add_u32 s63, s{S_WAVE}, {8*k}")
            a(f"s_lshl_b32 s64, s63, 10")
            a(f"s_add_u32 s65, s64, {LQ_K}")
            a(f"s_mov_b32 m0, s65")
            a(f"s_cmp_ge_u32 s63, 12")
            a(f"s_cselect_b32 s65, {VF - 12288 - KF}, 0")
            a(f"s_add_u32 s64, s64, s65")
            a(f"s_add_u32 s64, s64, {KF}")
            a(f"s_add_u32 s64, s64, s74")
            a(f"buffer_load_dwordx4 v7, {WSR}, s64 offen sc1 lds")
    def big():
        for tt in range(2):
            gemm_unit(a, 20, [W0, W1], [ACC+8*tt, ACC+8*tt+4], FR, NF, 8, tt*20480, True)
        a("s_nop 7")
        cvt4(a, O_, ACC, ACC+4); cvt4(a, O_+4, ACC+8, ACC+12)
        a(f"ds_write_b128 v9, v[{O_}:{O_+3}]")
        a(f"ds_write_b128 v9, v[{O_+4}:{O_+7}] offset:6144")
    def small():
        for tt in range(2):
            gemm_unit(a, 20, [W0], [ACC+4*tt], FR, NF, 8, tt*20480, True)
        a("s_nop 7")
        cvt4(a, O_, ACC, ACC+4)
        a(f"ds_write_b64 v9, v[{O_}:{O_+1}]")
        a(f"ds_write_b64 v9, v[{O_+2}:{O_+3}] offset:6144")
    top = xn_loop(a, cfg, big, small, True, pre_dma)
    a(f"s_add_u32 s75, s{S_U}, 1")
    if not cfg.get("nowait"): flag_wait(a, 11, 75, 78, 2, sleep=1)
    a(f"s_lshl_b32 s74, s{S_U}, 5")
    a(f"s_add_u32 s74, s74, s61")
    for k in range(2):
        lsk = a.newlabel("qm")
        if k:
            a(f"s_cmp_eq_u32 s{S_WAVE}, 0")
            a(f"s_cbranch_scc0 {lsk}")
        a(f"s_add_u32 s63, s{S_WAVE}, {8*k}")
        a(f"s_lshl_b32 s64, s63, 10")
        a(f"s_add_u32 s65, s64, {LQ_KM}")
        a(f"s_mov_b32 m0, s65")
        a(f"s_cmp_ge_u32 s63, 6")
        a(f"s_cselect_b32 s65, 3, 6")
        a(f"s_mul_i32 s65, s65, s74")
        a(f"s_lshl_b32 s65, s65, 10")
        a(f"s_add_u32 s64, s64, s65")
        a(f"s_cmp_ge_u32 s63, 6")
        a(f"s_cselect_b32 s65, {VM - 6144 - KM}, 0")
        a(f"s_add_u32 s64, s64, s65")
        a(f"s_add_u32 s64, s64, {KM}")
        a(f"buffer_load_dwordx4 v7, {WSR}, s64 offen sc1 lds")
        a.label(lsk)
    a("s_waitcnt vmcnt(0) lgkmcnt(0)")
    a("s_barrier")
    skip = a.newlabel("qskip")
    a(f"s_cmp_ge_u32 s{S_WAVE}, 6")
    a(f"s_cbranch_scc1 {skip}")
    QF = 64
    KFR = 16
    S0, S1, SM = 48, 52, 56
    mx, tmp = 60, 61
    PB, PM = 88, 92
    ONE = 2
    for ks in range(6): a(f"ds_read_b128 v[{QF+4*ks}:{QF+4*ks+3}], v12 offset:{ks*1024}")
    def stile(acc, off):
        for ks in range(6): a(f"ds_read_b128 v[{KFR+4*ks}:{KFR+4*ks+3}], v6 offset:{off+ks*1024}")
        for ks in range(6):
            a(f"s_waitcnt lgkmcnt({5-ks})")
            c = "0" if ks == 0 else f"v[{acc}:{acc+3}]"
            a(f"v_mfma_f32_16x16x32_bf16 v[{acc}:{acc+3}], v[{KFR+4*ks}:{KFR+4*ks+3}], v[{QF+4*ks}:{QF+4*ks+3}], {c}")
    stile(S0, 0)
    stile(SM, LQ_KM - LQ_K)
    lq0 = a.newlabel("q0"); lq1 = a.newlabel("q1")
    a(f"v_mov_b32 v{tmp}, 0xf149f2ca")
    a(f"s_cmp_eq_u32 s79, 0")
    a(f"s_cbranch_scc1 {lq0}")
    stile(S1, 6144)
    a("s_nop 7")
    for r in range(4): a(f"v_cndmask_b32 v{S1+r}, v{S1+r}, v{tmp}, s[{82+2*r}:{83+2*r}]")
    a(f"s_branch {lq1}")
    a.label(lq0)
    a("s_nop 7")
    for r in range(4): a(f"v_cndmask_b32 v{S0+r}, v{S0+r}, v{tmp}, s[{82+2*r}:{83+2*r}]")
    for r in range(4): a(f"v_mov_b32 v{S1+r}, v{tmp}")
    a.label(lq1)
    VT = 16
    VMR = 32
    for t in range(4): a(f"ds_read_b128 v[{VT+4*t}:{VT+4*t+3}], v13 offset:{t*1024}")
    for t in range(4):
        a(f"ds_read_b32 v{VMR+2*t}, v14 offset:{t*256}")
        a(f"v_mov_b32 v{VMR+2*t+1}, 0")
    vals = [S0, S0+1, S0+2, S0+3, S1, S1+1, S1+2, S1+3, SM, SM+1]
    a(f"v_max3_f32 v{mx}, v{vals[0]}, v{vals[1]}, v{vals[2]}")
    for i in range(3, 9, 2): a(f"v_max3_f32 v{mx}, v{mx}, v{vals[i]}, v{vals[i+1]}")
    a(f"v_max_f32 v{mx}, v{mx}, v{vals[9]}")
    for op in ("v_permlane16_swap_b32", "v_permlane32_swap_b32"):
        a(f"v_mov_b32 v{tmp}, v{mx}")
        a("s_nop 1")
        a(f"{op} v{mx}, v{tmp}")
        a(f"v_max_f32 v{mx}, v{mx}, v{tmp}")
    a(f"v_mul_f32 v{mx}, s81, v{mx}")
    for v in vals: a(f"v_fma_f32 v{v}, v{v}, s81, -v{mx}")
    for v in vals: a(f"v_exp_f32 v{v}, v{v}")
    for k in range(4): a(f"v_mov_b32 v{ONE+k}, 0x3f803f80")
    a(f"v_mov_b32 v{PM+1}, 0")
    cvt4(a, PB, S0, S1)
    a(f"v_cvt_pk_bf16_f32 v{PM}, v{SM}, v{SM+1}")
    D = 64
    Z = 80
    a("s_waitcnt lgkmcnt(0)")
    a("s_nop 0")
    a(f"v_mfma_f32_16x16x16_bf16 v[{Z}:{Z+3}], v[{ONE}:{ONE+1}], v[{PM}:{PM+1}], 0")
    for t in range(4):
        a(f"v_mfma_f32_16x16x16_bf16 v[{D+4*t}:{D+4*t+3}], v[{VMR+2*t}:{VMR+2*t+1}], v[{PM}:{PM+1}], 0")
    a("s_nop 1")
    a(f"v_mfma_f32_16x16x32_bf16 v[{Z}:{Z+3}], v[{ONE}:{ONE+3}], v[{PB}:{PB+3}], v[{Z}:{Z+3}]")
    for t in range(4):
        a(f"v_mfma_f32_16x16x32_bf16 v[{D+4*t}:{D+4*t+3}], v[{VT+4*t}:{VT+4*t+3}], v[{PB}:{PB+3}], v[{D+4*t}:{D+4*t+3}]")
    a("s_nop 3")
    a(f"v_rcp_f32 v{tmp}, v{Z}")
    a("s_nop 6")
    for k in range(16): a(f"v_mul_f32 v{D+k}, v{D+k}, v{tmp}")
    cvt4(a, 40, D, D+4); cvt4(a, 44, D+8, D+12)
    a(f"s_mul_i32 s74, s{S_U}, {2*32*6144}")
    st_intra(a, [f"buffer_store_dwordx4 v[40:43], v15, {WSR}, s74 offen",
                 f"buffer_store_dwordx4 v[44:47], v15, {WSR}, s74 offen offset:1024"])
    a.label(skip)
    loop_end(a, top, 64, True)

def gen_o_pre(a, cfg):
    a(f"s_sub_u32 s60, s{S_IDX}, 24")
    a(f"s_mul_i32 s62, s{S_GRP}, {768*1280}")
    a(f"s_mul_i32 s63, s60, 320")
    a(f"s_add_u32 s62, s62, s63")
    tr_base(a, 10, 320, 4, 8, 11)
    a(f"s_lshl_b32 s63, s{S_WAVE}, 1")
    a(f"s_add_u32 s64, s{S_WAVE}, 2")
    a(f"s_min_u32 s9, s63, s64")
    a(f"s_lshl_b32 s63, s9, 5")
    a(f"v_add_u32 v10, s63, v10")
    def two(l): a(f"s_cmp_lt_u32 s{S_WAVE}, 2"); a(f"s_cbranch_scc0 {l}")
    def one(l): a(f"s_cmp_lt_u32 s{S_WAVE}, 2"); a(f"s_cbranch_scc1 {l}")
    rd = make_reader(a, 10, 11, [(two, [(64, 0), (160, 32)]), (one, [(64, 0)])], 320, 128, 16)
    stage_weights(a, S_WO, 6144*640*2, 1280, 62, 768, 20, 128, 4, rd, vb=2)

def gen_o_main(a, cfg):
    a(f"v_lshlrev_b32 v7, 4, v1")
    a(f"v_mov_b32 v8, v7")
    a(f"v_and_b32 v9, 15, v1")
    a(f"v_mul_u32_u24 v9, 2560, v9")
    a(f"v_lshrrev_b32 v10, 4, v1")
    a(f"v_lshlrev_b32 v10, 4, v10")
    a(f"v_add_u32 v9, v9, v10")
    a(f"s_mul_i32 s63, s{S_GRP}, {2048*2560}")
    a(f"s_mul_i32 s64, s60, 640")
    a(f"s_add_u32 s63, s63, s64")
    a(f"s_lshl_b32 s64, s9, 6")
    a(f"s_add_u32 s63, s63, s64")
    a(f"s_add_u32 s63, s63, {PO}")
    a(f"v_add_u32 v9, s63, v9")
    a(f"s_lshl_b32 s63, s{S_GRP}, 8")
    a(f"s_add_u32 s63, s63, {FLI + 80}")
    a(f"v_min_u32 v11, 3, v1")
    a(f"v_lshlrev_b32 v11, 2, v11")
    a(f"v_add_u32 v11, s63, v11")
    a(f"s_mov_b32 s77, 0")
    a(f"s_mov_b32 s{S_U}, 0")
    top = a.newlabel("o")
    a.label(top)
    a(f"s_add_u32 s75, s{S_U}, 1")
    if not cfg.get("nowait"): flag_wait(a, 11, 75, 77, 12, sleep=1)
    for tt in range(2):
        a(f"s_lshl_b32 s70, s{S_U}, 1")
        a(f"s_add_u32 s70, s70, {tt}")
        a(f"s_lshl_b32 s70, s70, 3")
        a(f"s_add_u32 s70, s70, s{S_GRP}")
        a(f"s_mul_i32 s70, s70, {4*6144}")
        a(f"s_add_u32 s70, s70, {OF}")
        a(f"s_mov_b32 s71, {tt*24576}")
        dma_frags(a, 3, 70, 71)
    a(f"s_mul_i32 s74, s{S_U}, {32*2560}")
    one = a.newlabel("o1"); jn = a.newlabel("oj")
    a(f"s_cmp_lt_u32 s{S_WAVE}, 2")
    a(f"s_cbranch_scc0 {one}")
    for nt in (2, 1):
        if nt == 1: a.label(one)
        for tt in range(2):
            a(f"s_waitcnt vmcnt({3 if tt == 0 else nt})")
            a("s_barrier")
            gemm_unit(a, 24, [64, 160][:nt], [ACC+8*tt, ACC+8*tt+4][:nt], FR, NF, 8, tt*24576, True)
            a("s_nop 7")
            for t in range(nt):
                a(f"buffer_store_dwordx4 v[{ACC+8*tt+4*t}:{ACC+8*tt+4*t+3}], v9, {WSR}, s74 offen offset:{64*t} sc1")
            if tt == 0: a(f"s_add_u32 s74, s74, {16*2560}")
        if nt == 2: a(f"s_branch {jn}")
    a.label(jn)
    a("s_waitcnt vmcnt(0)")
    a("s_barrier")
    a(f"s_add_u32 s{S_U}, s{S_U}, 1")
    flag_set(a, S_FLAG, S_U, False, 2)
    a(f"s_cmp_lt_u32 s{S_U}, 64")
    a(f"s_cbranch_scc1 {top}")
    a("s_endpgm")

def gen_e_main(a, cfg):
    srd(a, SRD_M, S_X, 2048*640*2)
    srd(a, SRD_W, S_OUT, 2048*640*2)
    MR_ = f"s[{SRD_M}:{SRD_M+3}]"
    a(f"s_lshl_b32 s63, s60, 3")
    a(f"s_add_u32 s63, s63, s{S_WAVE}")
    a(f"s_lshl_b32 s63, s63, 9")
    a(f"v_lshlrev_b32 v7, 3, v1")
    a(f"v_add_u32 v7, s63, v7")
    a(f"v_lshlrev_b32 v8, 1, v7")
    a(f"v_add_u32 v8, {PO}, v8")
    a(f"v_add_u32 v9, {GB}, v7")
    a(f"v_min_u32 v11, 41, v1")
    a(f"v_lshlrev_b32 v11, 2, v11")
    a(f"v_add_u32 v11, {FLX}, v11")
    a(f"s_mov_b32 s77, 0")
    a(f"s_mov_b32 s{S_U}, 0")
    top = a.newlabel("e")
    a.label(top)
    a(f"s_mul_i32 s74, s{S_U}, {32*1280}")
    a(f"buffer_load_dwordx2 v[48:49], v7, {MR_}, s74 offen")
    a(f"s_add_u32 s75, s{S_U}, 1")
    if not cfg.get("nowait"): flag_wait(a, 11, 75, 77, 12, sleep=2)
    a(f"buffer_load_dwordx2 v[50:51], v9, {WSR}, s74 offen sc1")
    a(f"s_lshl_b32 s70, s74, 1")
    for g in range(8):
        a(f"buffer_load_dwordx4 v[{16+4*g}:{19+4*g}], v8, {WSR}, s70 offen sc1")
        a(f"s_add_u32 s70, s70, {2048*2560}")
    a("s_waitcnt vmcnt(0)")
    for st in (4, 2, 1):
        for g in range(st):
            for r in range(4): a(f"v_add_f32 v{16+4*g+r}, v{16+4*g+r}, v{16+4*(g+st)+r}")
    for r in range(4):
        round_bf16(a, 16+r, 16+r)
        src = 50 + (r >> 1); xs = 48 + (r >> 1)
        if r & 1:
            a(f"v_and_b32 v{20+r}, 0xffff0000, v{src}"); a(f"v_and_b32 v{24+r}, 0xffff0000, v{xs}")
        else:
            a(f"v_lshlrev_b32 v{20+r}, 16, v{src}"); a(f"v_lshlrev_b32 v{24+r}, 16, v{xs}")
        a(f"v_mul_f32 v{16+r}, v{16+r}, v{20+r}")
        round_bf16(a, 16+r, 16+r)
        a(f"v_add_f32 v{16+r}, v{16+r}, v{24+r}")
    a(f"v_cvt_pk_bf16_f32 v52, v16, v17")
    a(f"v_cvt_pk_bf16_f32 v53, v18, v19")
    a(f"buffer_store_dwordx2 v[52:53], v7, {WR}, s74 offen")
    a(f"s_add_u32 s{S_U}, s{S_U}, 1")
    a(f"s_cmp_lt_u32 s{S_U}, 64")
    a(f"s_cbranch_scc1 {top}")
    a("s_endpgm")
```

```python
from common import *
import math

C_EXP = (192 ** -0.5) * math.log2(math.e)
import struct
def f32hex(x): return hex(struct.unpack("<I", struct.pack("<f", x))[0])

POLL_MAX = 200000
WSR = f"s[{SRD_WS}:{SRD_WS+3}]"

L_MEM = 0
L_QK = 10240
L_K = L_QK + 8*144
L_VT = 12800
L_RED = L_VT + 16384

def st_intra(a, instr):
    l1 = a.newlabel("sf"); l2 = a.newlabel("sd")
    a(f"s_cmp_lg_u32 s{S_MODE}, 0")
    a(f"s_cbranch_scc1 {l1}")
    for i in instr: a(i)
    a(f"s_branch {l2}")
    a.label(l1)
    for i in instr: a(i + " sc1")
    a.label(l2)

def maxtree(a, regs, t):
    regs = list(regs)
    a(f"v_max3_u32 v{t}, v{regs[0]}, v{regs[1]}, v{regs[2]}")
    i = 3
    while i < len(regs):
        if i + 1 < len(regs):
            a(f"v_max3_u32 v{t}, v{t}, v{regs[i]}, v{regs[i+1]}"); i += 2
        else:
            a(f"v_max_u32 v{t}, v{t}, v{regs[i]}"); i += 1

POLL_DEPTH = 2
def poll_prep(a, regs):
    for r in regs: a(f"v_mov_b32 v{r}, -1")

def poll(a, loads, regs, t, scnt, depth=None):
    depth = depth or POLL_DEPTH
    l = a.newlabel("poll"); d = a.newlabel("pd")
    K = len(loads)
    a(f"s_mov_b32 s{scnt}, {POLL_MAX}")
    a.label(l)
    for x in loads: a(x)
    a(f"s_sub_u32 s{scnt}, s{scnt}, 1")
    a(f"s_cbranch_scc1 {d}")
    a(f"s_waitcnt vmcnt({K*(depth-1)})")
    maxtree(a, regs, t)
    a(f"v_cmp_eq_u32 vcc, -1, v{t}")
    a(f"s_cbranch_vccnz {l}")
    a.label(d)

def poll_tag(a, loads, regs, t, scnt, stag, depth):
    K = len(loads)
    d = a.newlabel("ptd"); l1 = a.newlabel("pt1")
    a(f"s_mov_b32 s{scnt}, {POLL_MAX}")
    a(f"s_cmp_eq_u32 s{stag}, 1")
    a(f"s_cbranch_scc1 {l1}")
    for tag in (0, 1):
        l = a.newlabel("pt")
        if tag: a.label(l1)
        a.label(l)
        for x in loads: a(x)
        a(f"s_sub_u32 s{scnt}, s{scnt}, 1")
        a(f"s_cbranch_scc1 {d}")
        a(f"s_waitcnt vmcnt({K*(depth-1)})")
        op = (lambda dd, x, y, z: f"v_bitop3_b32 v{dd}, v{x}, v{y}, v{z} bitop3:0x80") if tag else (lambda dd, x, y, z: f"v_or3_b32 v{dd}, v{x}, v{y}, v{z}")
        a(op(t, regs[0], regs[1], regs[2]))
        i = 3
        while i < len(regs):
            a(op(t, t, regs[i], regs[min(i+1, len(regs)-1)])); i += 2
        a(f"v_and_b32 v{t}, 1, v{t}")
        a(f"v_cmp_ne_u32 vcc, {tag}, v{t}")
        a(f"s_cbranch_vccnz {l}")
        if not tag: a(f"s_branch {d}")
    a.label(d)

def calibrate(a):
    a(f"s_lshl_b32 s63, s2, 3")
    a(f"s_add_u32 s63, s63, s{S_WAVE}")
    a(f"s_lshr_b32 s64, s63, 6")
    a(f"s_lshl_b32 s64, s64, 14")
    a(f"s_and_b32 s63, s63, 63")
    a(f"s_lshl_b32 s63, s63, 7")
    a(f"s_add_u32 s63, s63, s64")
    a(f"s_add_u32 s63, s63, {CAL}")
    a(f"s_add_u32 s64, s63, 8192")
    a(f"v_mov_b32 v2, 0")
    a(f"buffer_store_dword v2, v2, {WSR}, s63 offen sc1")
    a(f"buffer_store_dword v2, v2, {WSR}, s64 offen sc1")
    a("s_waitcnt vmcnt(0)")
    a("s_barrier")
    l = a.newlabel("cal")
    a(f"s_cmp_eq_u32 s{S_WAVE}, 0")
    a(f"s_cbranch_scc0 {l}")
    a("s_memtime s[88:89]")
    a("s_waitcnt lgkmcnt(0)")
    a(f"buffer_load_dword v3, v2, {WSR}, s63 offen sc1")
    a("s_waitcnt vmcnt(0)")
    a("s_memtime s[90:91]")
    a("s_waitcnt lgkmcnt(0)")
    a(f"buffer_load_dword v3, v2, {WSR}, s64 offen sc1")
    a("s_waitcnt vmcnt(0)")
    a("s_memtime s[92:93]")
    a("s_waitcnt lgkmcnt(0)")
    a("s_sub_u32 s92, s92, s90")
    a("s_sub_u32 s90, s90, s88")
    a("s_cmp_gt_u32 s90, s92")
    a("s_cselect_b32 s63, 1, 0")
    a("v_mov_b32 v3, s63")
    a("ds_write_b32 v2, v3")
    a("s_waitcnt lgkmcnt(0)")
    a.label(l)
    a("s_barrier")
    a("ds_read_b32 v3, v2")
    a("s_waitcnt lgkmcnt(0)")
    a(f"v_readfirstlane_b32 s63, v3")
    a(f"s_lshl_b32 s{S_NEAR}, s63, 13")
    a("s_barrier")

def stamp(a, cfg, k, sbase=90, nxt=None):
    if cfg.get("ts") and (cfg.get("sites") is None or k in cfg["sites"]):
        for (stepno, kk) in ((cfg["ts"], k),) + (((cfg["ts"]+1, nxt),) if nxt is not None else ()):
            l = a.newlabel("st")
            a(f"s_cmp_eq_u32 s73, {stepno}")
            a(f"s_cbranch_scc0 {l}")
            a(f"s_memrealtime s[88:89]")
            a("s_waitcnt lgkmcnt(0)")
            a(f"s_mov_b32 s{sbase+kk}, s88")
            a.label(l)

def gen_weight_load(a):
    vl, vo_qkv, vo_o, vt0, vt1, vra, vrb = 1, 2, 3, 4, 5, 6, 7
    a.c("---- weight load: per-lane DMA source offsets")
    a(f"v_and_b32 v{vt0}, 7, v{vl}")
    a(f"v_lshrrev_b32 v{vt1}, 5, v{vl}")
    a(f"s_and_b32 s63, s{S_WAVE}, 1")
    a(f"s_lshl_b32 s63, s63, 1")
    a(f"v_add_u32 v{vt1}, s63, v{vt1}")
    a(f"v_lshlrev_b32 v{vt1}, 1, v{vt1}")
    a(f"v_xor_b32 v{vt0}, v{vt0}, v{vt1}")
    a(f"v_lshlrev_b32 v{vt0}, 4, v{vt0}")
    a(f"v_lshrrev_b32 v{vt1}, 3, v{vl}")
    a(f"s_lshl_b32 s63, s{S_WAVE}, 3")
    a(f"v_add_u32 v{vt1}, s63, v{vt1}")
    a(f"v_mul_u32_u24 v{vo_qkv}, 12288, v{vt1}")
    a(f"v_add_u32 v{vo_qkv}, v{vo_qkv}, v{vt0}")
    a(f"v_mul_u32_u24 v{vo_o}, 1280, v{vt1}")
    a(f"v_add_u32 v{vo_o}, v{vo_o}, v{vt0}")
    a(f"s_mul_i32 s64, s62, 384")
    a(f"s_lshl_b32 s63, s61, 7")
    a(f"s_add_u32 s64, s64, s63")
    a(f"s_mul_i32 s65, s{S_GRP}, {768*1280}")
    a(f"s_lshl_b32 s63, s{S_IDX}, 7")
    a(f"s_add_u32 s65, s65, s63")
    a(f"v_lshrrev_b32 v{vt0}, 5, v{vl}")
    a(f"v_lshlrev_b32 v{vra}, 11, v{vt0}")
    a(f"v_bfe_u32 v{vt0}, v{vl}, 4, 1")
    a(f"v_mul_u32_u24 v{vt0}, {4*128+32}, v{vt0}")
    a(f"v_add_u32 v{vra}, v{vra}, v{vt0}")
    a(f"v_bfe_u32 v{vt0}, v{vl}, 2, 1")
    a(f"v_lshlrev_b32 v{vt0}, 7, v{vt0}")
    a(f"v_add_u32 v{vra}, v{vra}, v{vt0}")
    a(f"v_bfe_u32 v{vt0}, v{vl}, 3, 1")
    a(f"v_mul_u32_u24 v{vt0}, {8*128+64}, v{vt0}")
    a(f"v_add_u32 v{vra}, v{vra}, v{vt0}")
    a(f"v_and_b32 v{vt0}, 3, v{vl}")
    a(f"v_lshlrev_b32 v{vt0}, 3, v{vt0}")
    a(f"v_add_u32 v{vra}, v{vra}, v{vt0}")
    a(f"s_and_b32 s66, s{S_WAVE}, 3")
    def issue(sptr, nbytes, voff, sbase, rs, first, cnt, half):
        srd(a, SRD_W, sptr, nbytes)
        a(f"s_lshl_b32 s63, s{S_WAVE}, 10")
        a(f"s_add_u32 s63, s63, {half*81920}")
        a(f"s_add_u32 s67, s{sbase}, {first*64*rs}")
        for q in range(cnt):
            a(f"s_mov_b32 m0, s63")
            a(f"s_add_u32 s63, s63, 8192")
            a(f"buffer_load_dwordx4 v{voff}, s[{SRD_W}:{SRD_W+3}], s67 offen lds")
            a(f"s_add_u32 s67, s67, {64*rs}")
    def read_qkv(dst, half):
        a(f"s_lshl_b32 s63, s66, 5")
        a(f"v_xor_b32 v{vt0}, s63, v{vra}")
        a(f"v_add_u32 v{vt0}, {half*81920}, v{vt0}")
        a(f"v_add_u32 v{vt1}, 0x8000, v{vt0}")
        a(f"v_add_u32 v{vt1}, 0x8000, v{vt1}")
        n = 0
        for t in range(10):
            for rho in range(4):
                off = t*8192 + (rho >> 1)*4096 + (rho & 1)*256
                base = vt0
                if off >= 65536: off -= 65536; base = vt1
                a(f"ds_read_b64_tr_b16 v[{dst+t*8+rho*2}:{dst+t*8+rho*2+1}], v{base} offset:{off}")
                n += 1
                if n % 12 == 0: a("s_waitcnt lgkmcnt(4)")
        a("s_waitcnt lgkmcnt(0)")
    def read_wo(tps, vbase):
        n = 0
        for k, tp in enumerate(tps):
            for u in range(4):
                a(f"v_xor_b32 v{vt1}, {u*32}, v{vbase}")
                for rho in range(4):
                    off = k*8192 + (rho >> 1)*4096 + (rho & 1)*256
                    d = WO + (tp*4+u)*8 + rho*2
                    a(f"ds_read_b64_tr_b16 v[{d}:{d+1}], v{vt1} offset:{off}")
                a("s_waitcnt lgkmcnt(4)")
        a("s_waitcnt lgkmcnt(0)")
    WQKV = 640*6144*2
    issue(S_WQ, WQKV, vo_qkv, 64, 12288, 0, 10, 0)
    issue(S_WK, WQKV, vo_qkv, 64, 12288, 0, 10, 1)
    def only(qk, body):
        l = a.newlabel("wl")
        a(f"s_cmp_lt_u32 s{S_WAVE}, 4")
        a(f"s_cbranch_scc{0 if qk else 1} {l}")
        body()
        a.label(l)
    a("s_waitcnt vmcnt(10)"); a("s_barrier")
    only(True, lambda: read_qkv(WQ, 0))
    a("s_barrier")
    issue(S_WV, WQKV, vo_qkv, 64, 12288, 0, 10, 0)
    a("s_waitcnt vmcnt(10)"); a("s_barrier")
    only(True, lambda: read_qkv(WK, 1))
    a("s_barrier")
    issue(S_WO, WQKV, vo_o, 65, 1280, 0, 10, 1)
    a("s_waitcnt vmcnt(10)"); a("s_barrier")
    only(False, lambda: read_qkv(WV, 0))
    a("s_barrier")
    issue(S_WO, WQKV, vo_o, 65, 1280, 10, 2, 0)
    a("s_waitcnt vmcnt(0)"); a("s_barrier")
    def wo_body():
        a(f"s_mul_i32 s63, s66, {3*8192}")
        a(f"s_add_u32 s63, s63, 81920")
        a(f"v_add_u32 v{vrb}, s63, v{vra}")
        read_wo([0], vrb)
        a(f"s_add_u32 s63, s63, 8192")
        a(f"s_cmp_eq_u32 s66, 3")
        a(f"s_cselect_b32 s63, 0, s63")
        a(f"v_add_u32 v{vrb}, s63, v{vra}")
        read_wo([1, 2], vrb)
    only(False, wo_body)
    a("s_barrier")

WQ, WK = 96, 176
WV, WO = 176, 80

def gen_chain_init(a, cfg):
    a.c("==== chain init")
    a(f"s_mul_i32 s60, s{S_IDX}, 86")
    a(f"s_lshr_b32 s60, s60, 8")
    a(f"s_mul_i32 s61, s60, 3")
    a(f"s_sub_u32 s61, s{S_IDX}, s61")
    a(f"s_lshl_b32 s62, s{S_GRP}, 2")
    a(f"s_add_u32 s62, s62, s60")

def qk_addr_setup(a):
    a(f"v_lshlrev_b32 v7, 4, v1")
    a(f"s_lshl_b32 s63, s{S_WAVE}, 10")
    a(f"v_add_u32 v5, s63, v7")
    a(f"s_and_b32 s63, s{S_WAVE}, 1")
    a(f"s_add_u32 s63, s63, 8")
    a(f"s_lshl_b32 s63, s63, 10")
    a(f"v_add_u32 v6, s63, v7")
    a(f"s_lshl_b32 s63, s{S_GRP}, 16")
    a(f"s_add_u32 s63, s63, {MR}")
    a(f"v_add_u32 v2, s63, v5")
    a(f"v_add_u32 v3, 0x1000, v2")
    a(f"v_add_u32 v4, s63, v6")
    a(f"v_lshrrev_b32 v12, 4, v1")
    a(f"v_mul_u32_u24 v8, 288, v12")
    a(f"v_and_b32 v13, 15, v1")
    a(f"v_lshlrev_b32 v14, 1, v13")
    a(f"v_add_u32 v8, v8, v14")
    a(f"s_lshl_b32 s63, s{S_WAVE}, 5")
    a(f"s_add_u32 s63, s63, {L_QK}")
    a(f"v_add_u32 v8, s63, v8")
    a(f"v_and_b32 v14, 7, v1")
    a(f"v_mul_u32_u24 v9, 144, v14")
    a(f"v_lshlrev_b32 v15, 4, v12")
    a(f"v_add_u32 v9, v9, v15")
    a(f"v_add_u32 v9, {L_QK}, v9")
    a(f"v_bfe_u32 v10, v1, 2, 2")
    a(f"v_lshlrev_b32 v10, 1, v10")
    a(f"v_and_b32 v16, 1, v1")
    a(f"v_add_u32 v10, v10, v16")
    a(f"v_mul_u32_u24 v10, 144, v10")
    a(f"v_add_u32 v10, v10, v15")
    a(f"v_add_u32 v10, {L_K}, v10")
    a(f"v_mov_b32 v52, 0x4444")
    a(f"v_mov_b32 v17, 0xeeee")
    a(f"v_cmp_eq_u32 vcc, 1, v16")
    a("s_nop 1")
    a(f"v_cndmask_b32 v52, v52, v17, vcc")
    a(f"s_lshl_b32 s63, s{S_GRP}, 16")
    a(f"s_lshl_b32 s67, s60, 12")
    a(f"s_add_u32 s63, s63, s67")
    a(f"s_add_u32 s63, s63, {SR}")
    l1 = a.newlabel("qs"); l2 = a.newlabel("qs")
    a(f"s_cmp_eq_u32 s{S_WAVE}, 0")
    a(f"s_cbranch_scc0 {l1}")
    a(f"s_lshl_b32 s67, s61, 2")
    a(f"s_add_u32 s63, s63, s67")
    a(f"s_add_u32 s63, s63, 3072")
    a(f"v_add_u32 v11, s63, v7")
    a(f"s_branch {l2}")
    a.label(l1)
    a(f"s_lshl_b32 s67, s61, 10")
    a(f"s_add_u32 s63, s63, s67")
    a(f"s_sub_u32 s67, s{S_WAVE}, 1")
    a(f"s_lshl_b32 s67, s67, 9")
    a(f"s_add_u32 s63, s63, s67")
    a(f"v_lshlrev_b32 v11, 3, v12")
    a(f"v_add_u32 v11, v11, v14")
    a(f"v_lshlrev_b32 v11, 4, v11")
    a(f"v_add_u32 v11, s63, v11")
    a(f"v_mov_b32 v17, {OOB}")
    a(f"v_cmp_gt_u32 vcc, 8, v13")
    a("s_nop 1")
    a(f"v_cndmask_b32 v11, v17, v11, vcc")
    a.label(l2)
    a(f"v_cmp_le_u32 s[68:69], 8, v13")
    a(f"s_mul_i32 s63, s62, 6")
    a(f"s_lshl_b32 s67, s61, 1")
    a(f"s_add_u32 s63, s63, s67")
    a(f"s_lshl_b32 s63, s63, 10")
    a(f"s_add_u32 s63, s63, {KM}")
    a(f"v_add_u32 v0, s63, v7")


def qk_reset(a, sslot, neg):
    l1 = a.newlabel("qr"); l2 = a.newlabel("qr")
    a(f"s_cmp_eq_u32 s{S_WAVE}, 3")
    a(f"s_cbranch_scc1 {l2}")
    a(f"s_cmp_eq_u32 s{S_WAVE}, 0")
    a(f"s_cbranch_scc0 {l1}")
    st_intra(a, [f"buffer_store_dword v{neg}, v11, {WSR}, s{sslot} offen"])
    a(f"s_branch {l2}")
    a.label(l1)
    st_intra(a, [f"buffer_store_dwordx4 v[{neg}:{neg+3}], v11, {WSR}, s{sslot} offen"])
    a.label(l2)

def vo_addr_setup(a):
    a(f"s_and_b32 s66, s{S_WAVE}, 3")
    a(f"v_lshlrev_b32 v7, 4, v1")
    a(f"v_lshrrev_b32 v20, 4, v1")
    a(f"v_and_b32 v21, 15, v1")
    a(f"v_and_b32 v22, 7, v1")
    a(f"v_bfe_u32 v23, v1, 3, 1")
    a(f"s_lshl_b32 s63, s{S_GRP}, 16")
    a(f"s_lshl_b32 s67, s60, 12")
    a(f"s_add_u32 s67, s63, s67")
    a(f"s_add_u32 s67, s67, {SR}")
    a(f"v_lshlrev_b32 v2, 3, v20")
    a(f"v_add_u32 v2, v2, v22")
    a(f"v_lshlrev_b32 v2, 4, v2")
    a(f"v_lshlrev_b32 v24, 9, v23")
    a(f"v_add_u32 v2, v2, v24")
    a(f"v_add_u32 v2, s67, v2")
    a(f"s_add_u32 s67, s67, 3072")
    a(f"v_add_u32 v3, s67, v7")
    a(f"v_lshlrev_b32 v24, 5, v22")
    a(f"v_lshlrev_b32 v25, 3, v20")
    a(f"v_add_u32 v24, v24, v25")
    a(f"s_lshl_b32 s67, s{S_IDX}, 10")
    a(f"s_lshl_b32 s70, s66, 8")
    a(f"s_add_u32 s67, s67, s70")
    a(f"s_add_u32 s67, s67, s63")
    a(f"s_add_u32 s70, s67, {OR_}")
    a(f"v_add_u32 v4, s70, v24")
    a(f"v_mov_b32 v26, {OOB}")
    a(f"v_cmp_gt_u32 vcc, 8, v21")
    a("s_nop 1")
    a(f"v_cndmask_b32 v4, v26, v4, vcc")
    a(f"s_mul_i32 s70, s66, 3072")
    a(f"s_add_u32 s70, s70, s63")
    a(f"s_add_u32 s70, s70, {OR_}")
    a(f"v_add_u32 v5, s70, v7")
    a(f"v_lshlrev_b32 v6, 7, v20")
    a(f"v_lshlrev_b32 v24, 2, v21")
    a(f"v_add_u32 v6, v6, v24")
    a(f"s_lshl_b32 s70, s66, 9")
    a(f"s_add_u32 s70, s70, {L_RED}")
    a(f"v_add_u32 v6, s70, v6")
    a(f"s_lshl_b32 s70, s66, 11")
    a(f"s_add_u32 s70, s70, {L_RED}")
    a(f"v_add_u32 v8, s70, v7")
    a(f"s_lshl_b32 s70, s{S_IDX}, 1")
    a(f"s_lshr_b32 s71, s66, 1")
    a(f"s_add_u32 s70, s70, s71")
    a(f"s_lshl_b32 s70, s70, 14")
    a(f"s_and_b32 s71, s66, 1")
    a(f"s_lshl_b32 s71, s71, 12")
    a(f"s_add_u32 s70, s70, s71")
    a(f"s_add_u32 s70, s70, {XR}")
    a(f"s_add_u32 s71, s70, s{S_NEAR}")
    a(f"v_add_u32 v10, s71, v7")
    a(f"s_lshl_b32 s71, s{S_GRP}, 9")
    a(f"s_add_u32 s70, s70, s71")
    a(f"v_and_b32 v24, 31, v1")
    a(f"v_lshlrev_b32 v24, 4, v24")
    a(f"v_lshrrev_b32 v25, 5, v1")
    a(f"v_lshlrev_b32 v25, 13, v25")
    a(f"v_add3_u32 v9, v24, v25, s70")
    a(f"v_cmp_gt_u32 vcc, 32, v1")
    a("s_nop 1")
    a(f"v_lshlrev_b32 v24, 3, v1")
    a(f"s_add_u32 s70, s67, {MR}")
    a(f"v_add_u32 v11, s70, v24")
    a(f"v_cndmask_b32 v11, v26, v11, vcc")
    a(f"v_and_b32 v24, 1, v1")
    a(f"v_mov_b32 v12, 0x4444")
    a(f"v_mov_b32 v25, 0xeeee")
    a(f"v_cmp_eq_u32 vcc, 1, v24")
    a("s_nop 1")
    a(f"v_cndmask_b32 v12, v12, v25, vcc")
    a(f"s_mul_i32 s70, s62, 12")
    a(f"s_lshl_b32 s71, s61, 2")
    a(f"s_add_u32 s70, s70, s71")
    a(f"s_add_u32 s70, s70, s66")
    a(f"s_lshl_b32 s70, s70, 8")
    a(f"s_add_u32 s70, s70, {VM}")
    a(f"v_lshlrev_b32 v24, 2, v1")
    a(f"v_add_u32 v13, s70, v24")

def gen_chain_pre(a, cfg):
    lvo = a.newlabel("cvo"); ld = a.newlabel("cd")
    a(f"s_mov_b32 s{S_MODE}, 1")
    a(f"s_cmp_lt_u32 s{S_WAVE}, 4")
    a(f"s_cbranch_scc0 {lvo}")
    qk_addr_setup(a)
    for k in range(4): a(f"v_mov_b32 v{40+k}, -1")
    for slot in range(4):
        a(f"s_mov_b32 s72, {slot*16384}")
        qk_reset(a, 72, 40)
    a(f"s_branch {ld}")
    a.label(lvo)
    vo_addr_setup(a)
    for k in range(4): a(f"v_mov_b32 v{40+k}, -1")
    srd(a, SRD_M, S_MEM0, 8*640*2)
    a(f"v_lshrrev_b32 v24, 2, v1")
    a(f"v_mul_u32_u24 v24, 1280, v24")
    a(f"v_and_b32 v25, 3, v1")
    a(f"v_lshlrev_b32 v25, 3, v25")
    a(f"v_add_u32 v24, v24, v25")
    a(f"s_lshl_b32 s70, s{S_IDX}, 7")
    a(f"s_lshl_b32 s71, s66, 5")
    a(f"s_add_u32 s70, s70, s71")
    a(f"buffer_load_dwordx2 v[44:45], v24, s[{SRD_M}:{SRD_M+3}], s70 offen")
    lnb = a.newlabel("cnb")
    for slot in range(4):
        a(f"s_mov_b32 s72, {slot*16384}")
        a(f"buffer_store_dwordx2 v[40:41], v4, {WSR}, s72 offen sc1")
    a(f"s_cmp_lt_u32 s{S_IDX}, 10")
    a(f"s_cbranch_scc0 {lnb}")
    for slot in range(4):
        if slot < 2:
            a(f"s_mov_b32 s72, {slot*XR_SLOT}")
            a(f"buffer_store_dwordx4 v[40:43], v9, {WSR}, s72 offen sc1")
        if slot:
            a(f"s_mov_b32 s72, {slot*16384}")
            a(f"buffer_store_dwordx2 v[40:41], v11, {WSR}, s72 offen sc1")
    a("s_waitcnt vmcnt(0)")
    a(f"v_min_u32 v44, -2, v44")
    a(f"v_min_u32 v45, -2, v45")
    a(f"buffer_store_dwordx2 v[44:45], v11, {WSR}, 0 offen sc1")
    a.label(lnb)
    a.label(ld)

def gen_qk_loop(a, cfg):
    P = 40
    F = 56
    AQ, AK = 32, 36
    A_, B_, S_ = 24, 16, 12
    a.c("==== QK wave main loop")
    qk_addr_setup(a)
    a(f"s_lshl_b32 s63, s{S_WAVE}, 11")
    a(f"s_add_u32 s63, s63, {L_VT + 4096 - 2048}")
    a(f"v_add_u32 v53, s63, v7")
    a("s_mov_b32 s73, 0")
    for k in range(8): a(f"v_mov_b32 v{AQ+k}, 0")
    poll_prep(a, range(P, P+12))
    a("s_barrier")
    top = a.newlabel("qkloop"); done = a.newlabel("qkdone")
    a.label(top)
    a(f"s_and_b32 s72, s73, 3")
    a(f"s_lshl_b32 s72, s72, 14")
    a(f"s_and_b32 s75, s73, 1")
    a(f"s_lshl_b32 s75, s75, 13")
    a(f"v_add_u32 v54, s75, v53")
    a(f"ds_read_b128 v[{A_}:{A_+3}], v54")
    a(f"ds_read_b128 v[{A_+4}:{A_+7}], v54 offset:1024")
    if cfg.get("mdelay"): a(f"s_sleep {cfg['mdelay']}")
    poll(a, [f"buffer_load_dwordx4 v[{P+4*k}:{P+4*k+3}], v{2+k}, {WSR}, s72 offen sc1" for k in range(3)],
         range(P, P+12), 54, 76)
    stamp(a, cfg, 0, nxt=9)
    a(f"ds_write_b128 v5, v[{P}:{P+3}]")
    a(f"ds_write_b128 v5, v[{P+4}:{P+7}] offset:4096")
    a(f"ds_write_b128 v6, v[{P+8}:{P+11}]")
    a("s_waitcnt lgkmcnt(0)")
    a("s_barrier")
    stamp(a, cfg, 3)
    for t in range(10):
        a(f"ds_read_b128 v[{F+4*t}:{F+4*t+3}], v7 offset:{t*1024}")
    for t in range(10):
        a(f"s_waitcnt lgkmcnt({9-t})")
        a(f"v_smfmac_f32_16x16x64_bf16 v[{AQ}:{AQ+3}], v[{F+4*t}:{F+4*t+3}], v[{WQ+8*t}:{WQ+8*t+7}], v52")
        a(f"v_smfmac_f32_16x16x64_bf16 v[{AK}:{AK+3}], v[{F+4*t}:{F+4*t+3}], v[{WK+8*t}:{WK+8*t+7}], v52")
    a("s_nop 6")
    a(f"v_add_f32 v{AQ}, v{AQ}, v{AQ+1}")
    a(f"v_add_f32 v{AQ+2}, v{AQ+2}, v{AQ+3}")
    a(f"v_add_f32 v{AK}, v{AK}, v{AK+1}")
    a(f"v_add_f32 v{AK+2}, v{AK+2}, v{AK+3}")
    a(f"v_cvt_pk_bf16_f32 v54, v{AQ}, v{AQ+2}")
    a(f"v_cvt_pk_bf16_f32 v55, v{AK}, v{AK+2}")
    stamp(a, cfg, 4)
    a(f"ds_write_b16 v8, v54")
    a(f"ds_write_b16_d16_hi v8, v54 offset:144")
    a(f"ds_write_b16 v8, v55 offset:{8*144}")
    a(f"ds_write_b16_d16_hi v8, v55 offset:{9*144}")
    a("s_waitcnt lgkmcnt(0)")
    a("s_barrier")
    stamp(a, cfg, 1)
    lw0 = a.newlabel("w0"); lw3 = a.newlabel("w3"); lj = a.newlabel("wj")
    a(f"s_cmp_eq_u32 s{S_WAVE}, 3")
    a(f"s_cbranch_scc1 {lw3}")
    a(f"ds_read_b128 v[{B_}:{B_+3}], v9")
    a(f"ds_read_b128 v[{B_+4}:{B_+7}], v9 offset:64")
    a(f"s_cmp_eq_u32 s{S_WAVE}, 0")
    a(f"s_cbranch_scc1 {lw0}")
    a("s_waitcnt lgkmcnt(1)")
    a(f"v_mfma_f32_16x16x32_bf16 v[{S_}:{S_+3}], v[{A_}:{A_+3}], v[{B_}:{B_+3}], 0")
    a("s_waitcnt lgkmcnt(0)")
    a(f"v_mfma_f32_16x16x32_bf16 v[{S_}:{S_+3}], v[{A_+4}:{A_+7}], v[{B_+4}:{B_+7}], v[{S_}:{S_+3}]")
    a("s_nop 5")
    st_intra(a, [f"buffer_store_dwordx4 v[{S_}:{S_+3}], v11, {WSR}, s72 offen"])
    a(f"s_branch {lj}")
    a.label(lw0)
    a(f"ds_read_b128 v[{A_}:{A_+3}], v10")
    a(f"ds_read_b128 v[{A_+4}:{A_+7}], v10 offset:64")
    a("s_waitcnt lgkmcnt(1)")
    a(f"v_mfma_f32_16x16x32_bf16 v[{S_}:{S_+3}], v[{A_}:{A_+3}], v[{B_}:{B_+3}], 0")
    a("s_waitcnt lgkmcnt(0)")
    a(f"v_mfma_f32_16x16x32_bf16 v[{S_}:{S_+3}], v[{A_+4}:{A_+7}], v[{B_+4}:{B_+7}], v[{S_}:{S_+3}]")
    a("s_nop 7")
    a(f"v_cndmask_b32 v54, v{S_}, v{S_+1}, s[68:69]")
    st_intra(a, [f"buffer_store_dword v54, v11, {WSR}, s72 offen"])
    a.label(lw3)
    a.label(lj)
    stamp(a, cfg, 2)
    def km_store():
        l = a.newlabel("km")
        a(f"s_cmp_eq_u32 s{S_WAVE}, 0")
        a(f"s_cbranch_scc0 {l}")
        a(f"s_mul_i32 s74, s73, {32*6*1024}")
        st_intra(a, [f"buffer_store_dwordx4 v[{A_}:{A_+3}], v0, {WSR}, s74 offen",
                     f"buffer_store_dwordx4 v[{A_+4}:{A_+7}], v0, {WSR}, s74 offen offset:1024"])
        a.label(l)
    for k in range(8): a(f"v_mov_b32 v{AQ+k}, 0")
    a(f"s_cmp_eq_u32 s73, 63")
    a(f"s_cbranch_scc1 {done}")
    a(f"s_add_u32 s72, s73, 2")
    a(f"s_and_b32 s72, s72, 3")
    a(f"s_lshl_b32 s72, s72, 14")
    for k in range(4): a(f"v_mov_b32 v{S_+k}, -1")
    a("s_waitcnt vmcnt(0)")
    poll_prep(a, range(P, P+12))
    a("s_barrier")
    km_store()
    qk_reset(a, 72, S_)
    a(f"s_add_u32 s73, s73, 1")
    a("s_waitcnt vmcnt(0)")
    a("s_barrier")
    a(f"s_branch {top}")
    a.label(done)
    km_store()
    if cfg.get("ts"): ts_dump(a, cfg, 10)
    a("s_waitcnt vmcnt(0)")
    a("s_barrier")
    a("s_endpgm")

def ts_dump(a, cfg, n):
    a(f"s_lshl_b32 s88, s2, 3")
    a(f"s_add_u32 s88, s88, s{S_WAVE}")
    a(f"s_lshl_b32 s88, s88, 6")
    a(f"s_add_u32 s88, s88, {TSDBG}")
    a(f"v_mov_b32 v55, 0")
    for k in range(n):
        a(f"v_mov_b32 v54, s{90+k}")
        a(f"buffer_store_dword v54, v55, {WSR}, s88 offen offset:{4*k}")
        a("s_nop 0")

def gen_vo_loop(a, cfg):
    F = 40
    PL = 16
    VT = 32
    AV = 36
    VMP = 14
    T = 40
    PB = 48
    PM = 52
    D, Z = 56, 60
    ONE = 64
    ACC = 64
    a.c("==== VO wave main loop")
    vo_addr_setup(a)
    a("s_mov_b32 s73, 0")
    a(f"s_mov_b32 s77, {f32hex(C_EXP)}")
    a(f"v_mov_b32 v{VMP+1}, 0")
    top = a.newlabel("voloop"); done = a.newlabel("vodone"); nob = a.newlabel("vonob"); join = a.newlabel("vojoin")
    a(f"s_mul_i32 s82, s62, 12")
    a(f"s_lshr_b32 s74, s66, 1")
    a(f"s_mul_i32 s74, s74, 6")
    a(f"s_add_u32 s83, s82, s74")
    a(f"s_lshl_b32 s74, s61, 1")
    a(f"s_add_u32 s83, s83, s74")
    a(f"s_and_b32 s74, s66, 1")
    a(f"s_add_u32 s83, s83, s74")
    a(f"s_lshl_b32 s83, s83, 10")
    a(f"s_add_u32 s83, s83, {KF}")
    a(f"s_lshl_b32 s74, s61, 2")
    a(f"s_add_u32 s82, s82, s74")
    a(f"s_add_u32 s82, s82, s66")
    a(f"s_lshl_b32 s82, s82, 10")
    a(f"s_add_u32 s82, s82, {VF}")
    if "kv_setup" in cfg: cfg["kv_setup"](a)
    def prefetch(sseg):
        if "wait_kv" in cfg: cfg["wait_kv"](a, sseg)
        a(f"s_mul_i32 s74, s{sseg}, {32*12*1024}")
        a(f"s_and_b32 s75, s{sseg}, 1")
        a(f"s_lshl_b32 s75, s75, 13")
        a(f"s_lshl_b32 s79, s66, 10")
        a(f"s_add_u32 s75, s75, s79")
        a(f"s_add_u32 s75, s75, {L_VT}")
        a(f"s_mov_b32 m0, s75")
        a(f"s_add_u32 s79, s74, s82")
        a(f"buffer_load_dwordx4 v7, {WSR}, s79 offen sc1 lds")
        a(f"s_add_u32 s75, s75, 4096")
        a(f"s_mov_b32 m0, s75")
        a(f"s_add_u32 s79, s74, s83")
        a(f"buffer_load_dwordx4 v7, {WSR}, s79 offen sc1 lds")
    prefetch(73)
    a("s_waitcnt vmcnt(0)")
    a("s_barrier")
    a.label(top)
    for k in range(4): a(f"v_mov_b32 v{AV+k}, 0")
    a(f"s_and_b32 s72, s73, 3")
    a(f"s_lshr_b32 s85, s72, 1")
    a(f"s_lshl_b32 s72, s72, 14")
    a(f"s_and_b32 s75, s73, 1")
    a(f"s_mul_i32 s78, s75, {XR_SLOT}")
    a(f"s_lshl_b32 s75, s75, 13")
    a(f"s_lshl_b32 s74, s66, 10")
    a(f"s_add_u32 s75, s75, s74")
    a(f"v_add_u32 v{VT}, s75, v7")
    a(f"s_add_u32 s84, s73, 1")
    a("s_waitcnt vmcnt(0)")
    poll_prep(a, range(PL, PL+15))
    a("s_barrier")
    if "pub" in cfg: cfg["pub"](a, 73)
    lnp = a.newlabel("nopf")
    a(f"s_cmp_eq_u32 s73, 63")
    a(f"s_cbranch_scc1 {lnp}")
    prefetch(84)
    a.label(lnp)
    a("s_barrier")
    for t in range(10):
        a(f"ds_read_b128 v[{F+4*t}:{F+4*t+3}], v7 offset:{t*1024}")
    a(f"ds_read_b128 v[{VT}:{VT+3}], v{VT} offset:{L_VT}")
    for t in range(10):
        a(f"s_waitcnt lgkmcnt({10-t})")
        a(f"v_smfmac_f32_16x16x64_bf16 v[{AV}:{AV+3}], v[{F+4*t}:{F+4*t+3}], v[{WV+8*t}:{WV+8*t+7}], v12")
    a("s_waitcnt lgkmcnt(0)")
    a("s_nop 6")
    a(f"v_add_f32 v{AV}, v{AV}, v{AV+1}")
    a(f"v_add_f32 v{AV+2}, v{AV+2}, v{AV+3}")
    a(f"v_cvt_pk_bf16_f32 v{VMP}, v{AV}, v{AV+2}")
    a(f"s_cmp_eq_u32 s73, 63")
    a(f"s_cbranch_scc1 {done}")
    for k in range(4): a(f"v_mov_b32 v{ONE+k}, 0x3f803f80")
    a(f"v_mov_b32 v{PM+1}, 0")
    stamp(a, cfg, 0)
    if cfg.get("sdelay"): a(f"s_sleep {cfg['sdelay']}")
    poll(a, [f"buffer_load_dwordx4 v[{PL+4*k}:{PL+4*k+3}], v2, {WSR}, s72 offen offset:{k*1024} sc1" for k in range(3)] +
            [f"buffer_load_dwordx3 v[{PL+12}:{PL+14}], v3, {WSR}, s72 offen sc1"],
         range(PL, PL+15), T+6, 76)
    stamp(a, cfg, 1)
    for r in range(4): a(f"v_add_f32 v{T+r}, v{PL+r}, v{PL+4+r}")
    a(f"v_add_f32 v{T+4}, v{PL+12}, v{PL+13}")
    for r in range(4): a(f"v_add_f32 v{T+r}, v{T+r}, v{PL+8+r}")
    a(f"v_add_f32 v{T+4}, v{T+4}, v{PL+14}")
    mx, tmp = T+5, T+6
    a(f"v_max3_f32 v{mx}, v{T}, v{T+1}, v{T+2}")
    a(f"v_max3_f32 v{mx}, v{mx}, v{T+3}, v{T+4}")
    a("s_nop 1")
    a(f"v_max_f32_dpp v{mx}, v{mx}, v{mx} row_ror:8 row_mask:0xf bank_mask:0xf")
    a(f"v_mov_b32 v{tmp}, v{mx}")
    a("s_nop 1")
    a(f"v_permlane16_swap_b32 v{mx}, v{tmp}")
    a(f"v_max_f32 v{mx}, v{mx}, v{tmp}")
    a(f"v_mov_b32 v{tmp}, v{mx}")
    a("s_nop 1")
    a(f"v_permlane32_swap_b32 v{mx}, v{tmp}")
    a(f"v_max_f32 v{mx}, v{mx}, v{tmp}")
    a(f"v_mul_f32 v{mx}, s77, v{mx}")
    for r in range(5): a(f"v_fma_f32 v{T+r}, v{T+r}, s77, -v{mx}")
    for r in (4, 0, 1, 2, 3): a(f"v_exp_f32 v{T+r}, v{T+r}")
    a(f"v_mov_b32_dpp v{tmp}, v{T+4} row_ror:8 row_mask:0xf bank_mask:0xf")
    a(f"v_cvt_pk_bf16_f32 v{PB}, v{T}, v{T+1}")
    a(f"v_cvt_pk_bf16_f32 v{PB+1}, v{T+2}, v{T+3}")
    a(f"v_cvt_pk_bf16_f32 v{PM}, v{T+4}, v{tmp}")
    a(f"v_mov_b32_dpp v{PB+2}, v{PB} row_ror:8 row_mask:0xf bank_mask:0xf")
    a(f"v_mov_b32_dpp v{PB+3}, v{PB+1} row_ror:8 row_mask:0xf bank_mask:0xf")
    a(f"v_mfma_f32_16x16x16_bf16 v[{Z}:{Z+3}], v[{ONE}:{ONE+1}], v[{PM}:{PM+1}], 0")
    a(f"v_mfma_f32_16x16x16_bf16 v[{D}:{D+3}], v[{VMP}:{VMP+1}], v[{PM}:{PM+1}], 0")
    a(f"v_mfma_f32_16x16x32_bf16 v[{Z}:{Z+3}], v[{ONE}:{ONE+3}], v[{PB}:{PB+3}], v[{Z}:{Z+3}]")
    a(f"v_mfma_f32_16x16x32_bf16 v[{D}:{D+3}], v[{VT}:{VT+3}], v[{PB}:{PB+3}], v[{D}:{D+3}]")
    a("s_nop 6")
    a(f"v_rcp_f32 v{tmp}, v{Z}")
    a("s_nop 0")
    for r in range(4): a(f"v_mul_f32 v{D+r}, v{D+r}, v{tmp}")
    a(f"v_cvt_pk_bf16_f32 v{T}, v{D}, v{D+1}")
    a(f"v_cvt_pk_bf16_f32 v{T+1}, v{D+2}, v{D+3}")
    a(f"v_min_u32 v{T}, -2, v{T}")
    a(f"v_min_u32 v{T+1}, -2, v{T+1}")
    a("s_waitcnt vmcnt(0)")
    st_intra(a, [f"buffer_store_dwordx2 v[{T}:{T+1}], v4, {WSR}, s72 offen"])
    stamp(a, cfg, 2)
    a(f"s_cmp_lt_u32 s{S_IDX}, 10")
    a(f"s_cbranch_scc0 {nob}")
    poll_prep(a, range(PL, PL+12))
    for k in range(16): a(f"v_mov_b32 v{ACC+k}, 0")
    if cfg.get("odelay"): a(f"s_sleep {cfg['odelay']}")
    poll(a, [f"buffer_load_dwordx4 v[{PL+4*k}:{PL+4*k+3}], v5, {WSR}, s72 offen offset:{k*1024} sc1" for k in range(3)],
         range(PL, PL+12), T+6, 76)
    stamp(a, cfg, 3)
    for tp in range(3):
        for u in range(4):
            w = WO + (tp*4+u)*8
            a(f"v_smfmac_f32_16x16x64_bf16 v[{ACC+4*u}:{ACC+4*u+3}], v[{PL+4*tp}:{PL+4*tp+3}], v[{w}:{w+7}], v12")
    a("s_nop 4")
    for u in range(4):
        if u == 3: a("s_nop 0")
        a(f"v_add_f32 v{ACC+4*u}, v{ACC+4*u}, v{ACC+4*u+1}")
        a(f"v_add_f32 v{ACC+4*u+2}, v{ACC+4*u+2}, v{ACC+4*u+3}")
        a(f"ds_write_b32 v6, v{ACC+4*u} offset:{u*2048}")
        a(f"ds_write_b32 v6, v{ACC+4*u+2} offset:{u*2048+64}")
    a("s_waitcnt lgkmcnt(0)")
    stamp(a, cfg, 7)
    a("s_barrier")
    stamp(a, cfg, 8)
    a(f"ds_read_b128 v[{T}:{T+3}], v8")
    a(f"ds_read_b128 v[{T+4}:{T+7}], v8 offset:1024")
    a("s_waitcnt lgkmcnt(0)")
    def half_sum(src):
        for r in range(4): a(f"v_mov_b32 v{src+4+r}, v{src+r}")
        a("s_nop 0")
        for r in range(4): a(f"v_permlane32_swap_b32 v{src+r}, v{src+4+r}")
        for r in range(4): a(f"v_add_f32 v{src+r}, v{src+r}, v{src+4+r}")
    for r in range(4): a(f"v_add_f32 v{T+r}, v{T+r}, v{T+4+r}")
    half_sum(T)
    for r in range(4): a(f"v_bfi_b32 v{T+r}, 1, s85, v{T+r}")
    a("s_waitcnt vmcnt(0)")
    a(f"buffer_store_dwordx4 v[{T}:{T+3}], v9, {WSR}, s78 offen sc1")
    stamp(a, cfg, 4)
    a(f"s_mul_i32 s74, s73, {32*12*256}")
    a(f"s_add_u32 s79, s73, 2")
    a(f"s_and_b32 s79, s79, 3")
    a(f"s_lshl_b32 s79, s79, 14")
    a(f"s_add_u32 s81, s73, 3")
    a(f"s_and_b32 s81, s81, 3")
    a(f"s_lshl_b32 s81, s81, 14")
    for k in range(4): a(f"v_mov_b32 v{D+k}, -1")
    st_intra(a, [f"buffer_store_dword v{VMP}, v13, {WSR}, s74 offen",
                 f"buffer_store_dwordx2 v[{D}:{D+1}], v4, {WSR}, s79 offen",
                 f"buffer_store_dwordx2 v[{D}:{D+1}], v11, {WSR}, s81 offen"])
    a(f"s_xor_b32 s80, s85, 1")
    for r in range(PL, PL+16): a(f"v_mov_b32 v{r}, s80")
    a(f"s_add_u32 s81, s73, 1")
    a(f"s_and_b32 s81, s81, 3")
    a(f"s_lshl_b32 s81, s81, 14")
    if cfg.get("xdelay"): a(f"s_sleep {cfg['xdelay']}")
    poll_tag(a, [f"buffer_load_dwordx4 v[{PL+4*k}:{PL+4*k+3}], v10, {WSR}, s78 offen offset:{k*1024} sc1" for k in range(4)],
         list(range(PL, PL+16)), T+8, 76, 85, depth=cfg.get("xdepth", 4))
    stamp(a, cfg, 5)
    X0 = 48
    for r in range(4): a(f"v_add_f32 v{X0+r}, v{PL+r}, v{PL+4+r}")
    for r in range(4): a(f"v_add_f32 v{X0+4+r}, v{PL+8+r}, v{PL+12+r}")
    for r in range(4): a(f"v_add_f32 v{X0+r}, v{X0+r}, v{X0+4+r}")
    half_sum(X0)
    a(f"v_cvt_pk_bf16_f32 v{T}, v{X0}, v{X0+1}")
    a(f"v_cvt_pk_bf16_f32 v{T+1}, v{X0+2}, v{X0+3}")
    a(f"v_min_u32 v{T}, -2, v{T}")
    a(f"v_min_u32 v{T+1}, -2, v{T+1}")
    st_intra(a, [f"buffer_store_dwordx2 v[{T}:{T+1}], v11, {WSR}, s81 offen"])
    a("s_barrier")
    stamp(a, cfg, 6)
    if cfg.get("memdbg"):
        l = a.newlabel("md")
        a(f"s_cmp_lg_u32 s{S_GRP}, 0")
        a(f"s_cbranch_scc1 {l}")
        a(f"s_mul_i32 s74, s73, 16384")
        a(f"s_add_u32 s74, s74, {MEMDBG - MR}")
        a(f"buffer_store_dwordx2 v[{T}:{T+1}], v11, {WSR}, s74 offen")
        a.label(l)
    a(f"s_branch {join}")
    a.label(nob)
    a(f"s_mul_i32 s74, s73, {32*12*256}")
    a(f"s_add_u32 s79, s73, 2")
    a(f"s_and_b32 s79, s79, 3")
    a(f"s_lshl_b32 s79, s79, 14")
    for k in range(2): a(f"v_mov_b32 v{D+k}, -1")
    st_intra(a, [f"buffer_store_dword v{VMP}, v13, {WSR}, s74 offen",
                 f"buffer_store_dwordx2 v[{D}:{D+1}], v4, {WSR}, s79 offen"])
    a("s_waitcnt vmcnt(0)")
    a("s_barrier")
    a("s_barrier")
    a.label(join)
    a(f"s_add_u32 s73, s73, 1")
    a(f"s_branch {top}")
    a.label(done)
    a(f"s_mul_i32 s74, s73, {32*12*256}")
    st_intra(a, [f"buffer_store_dword v{VMP}, v13, {WSR}, s74 offen"])
    if cfg.get("ts"): ts_dump(a, cfg, 10)
    a("s_waitcnt vmcnt(0)")
    a("s_barrier")
    if "pub" in cfg: cfg["pub"](a, 84)
    a("s_endpgm")

def gen_chain_main(a, cfg):
    lvo = a.newlabel("chvo")
    a(f"s_cmp_lt_u32 s{S_WAVE}, 4")
    a(f"s_cbranch_scc0 {lvo}")
    gen_qk_loop(a, cfg)
    a.label(lvo)
    gen_vo_loop(a, cfg)
```

```python
KNAME = "recurrent_scan__memory_aug_recurrent_mem_tr__glu_gated_bilinear__prompt_kernel"

XN = 0x0000000
KF = 0x0400000
VF = 0x1C00000
OF = 0x3400000
KM = 0x4C00000
VM = 0x5800000
HF = 0x5E00000
GB = 0x6400000
PO = 0x6A00000
SY = 0x9200000
XR = SY + 0x000000
XR_SLOT = 0x50000
CAL = SY + 0x0A0000
SR = SY + 0x200000
OR_ = SY + 0x280000
MR = SY + 0x300000
FLI = SY + 0x380000
FLX = SY + 0x381000
MEMDBG = SY + 0x400000
TSDBG = SY + 0x600000
WS_BYTES = 268435456
OOB = 0x40000000

class Asm:
    def __init__(self):
        self.lines = []
        self.nlab = 0
    def __call__(self, s):
        for l in s.strip("\n").split("\n"):
            self.lines.append("    " + l.strip())
    def label(self, l):
        self.lines.append(l + ":")
    def newlabel(self, p="L"):
        self.nlab += 1
        return f"{p}_{self.nlab}"
    def c(self, s):
        self.lines.append("    ; " + s)
    def text(self):
        return "\n".join(self.lines) + "\n"

def vr(b, n=1):
    return f"v{b}" if n == 1 else f"v[{b}:{b+n-1}]"
def sr(b, n=1):
    return f"s{b}" if n == 1 else f"s[{b}:{b+n-1}]"

S_X, S_MEM0, S_WQ, S_WK, S_WV, S_WO, S_SEG, S_BX, S_WG, S_WU, S_WD, S_OUT, S_DBG, S_WSP = [16 + 2*i for i in range(14)]
SRD_WS = 44
SRD_W = 48
SRD_M = 52
SRD_D = 56
S_WAVE = 3
S_GRP = 4
S_IDX = 5
S_NEAR = 7
S_MODE = 6

def srd(a, d, base, nbytes):
    a(f"s_mov_b32 s{d}, s{base}")
    a(f"s_and_b32 s{d+1}, s{base+1}, 0xffff")
    a(f"s_mov_b32 s{d+2}, {hex(nbytes)}")
    a(f"s_mov_b32 s{d+3}, 0x00020000")
```

```python
from common import *
import chain, bulk

HEADER = """; generated by gen/top.py
; @launch grid=(256,1,1) block=(512,1,1) lds=163840
.amdgcn_target "amdgcn-amd-amdhsa--gfx950"
.text
.globl {k}
.p2align 8
.type {k},@function
{k}:
"""
FOOTER = """
.section .rodata,"a"
.p2align 6
.amdhsa_kernel {k}
  .amdhsa_next_free_vgpr 256
  .amdhsa_next_free_sgpr 102
  .amdhsa_accum_offset 256
  .amdhsa_group_segment_fixed_size 0
  .amdhsa_kernarg_size 112
  .amdhsa_user_sgpr_count 2
  .amdhsa_user_sgpr_kernarg_segment_ptr 1
  .amdhsa_system_sgpr_workgroup_id_x 1
.end_amdhsa_kernel
"""
DSR = f"s[{SRD_D}:{SRD_D+3}]"

def entry(a):
    a("s_cmp_ge_u32 s2, 256")
    a("s_cbranch_scc1 L_exit")
    a("s_load_dwordx16 s[16:31], s[0:1], 0")
    a("s_load_dwordx8 s[32:39], s[0:1], 64")
    a("s_load_dwordx4 s[40:43], s[0:1], 96")
    a("v_lshrrev_b32 v2, 6, v0")
    a("v_and_b32 v1, 63, v0")
    a(f"v_readfirstlane_b32 s{S_WAVE}, v2")
    a(f"s_and_b32 s{S_GRP}, s2, 7")
    a(f"s_lshr_b32 s{S_IDX}, s2, 3")
    a("s_waitcnt lgkmcnt(0)")
    srd(a, SRD_WS, S_WSP, WS_BYTES)
    srd(a, SRD_D, S_DBG, 256)

def arrive(a):
    a("s_waitcnt vmcnt(0)")
    a("s_barrier")
    l = a.newlabel("arr")
    a(f"s_cmp_eq_u32 s{S_WAVE}, 0")
    a(f"s_cbranch_scc0 {l}")
    a("s_getreg_b32 s63, hwreg(HW_REG_XCC_ID)")
    a("s_and_b32 s63, s63, 15")
    a("s_lshl_b32 s63, 1, s63")
    a("v_mov_b32 v200, s63")
    a(f"s_lshl_b32 s63, s{S_GRP}, 2")
    a("s_add_u32 s63, s63, 128")
    a(f"v_mov_b32 v201, {OOB}")
    a("v_cmp_eq_u32 vcc, 0, v1")
    a("s_nop 1")
    a("v_cndmask_b32 v201, v201, v1, vcc")
    a(f"buffer_atomic_or v200, v201, {DSR}, s63 offen sc1")
    a("s_waitcnt vmcnt(0)")
    a("v_mov_b32 v200, 1")
    a(f"buffer_atomic_add v200, v201, {DSR}, 0 offen sc1")
    a.label(l)

def wait_all(a, vt=8):
    l = a.newlabel("wa"); d = a.newlabel("wad")
    a(f"v_mov_b32 v{vt}, 0")
    a(f"s_mov_b32 s76, 2000000")
    a.label(l)
    a(f"buffer_load_dword v{vt+1}, v{vt}, {DSR}, 0 offen sc1")
    a("s_sub_u32 s76, s76, 1")
    a(f"s_cbranch_scc1 {d}")
    a("s_waitcnt vmcnt(0)")
    a(f"v_readfirstlane_b32 s63, v{vt+1}")
    a("s_cmp_ge_u32 s63, 256")
    a(f"s_cbranch_scc1 {d}")
    a("s_sleep 4")
    a(f"s_branch {l}")
    a.label(d)
    a(f"s_lshl_b32 s63, s{S_GRP}, 2")
    a("s_add_u32 s63, s63, 128")
    a(f"buffer_load_dword v{vt+1}, v{vt}, {DSR}, s63 offen sc1")
    a("s_waitcnt vmcnt(0)")
    a(f"v_readfirstlane_b32 s63, v{vt+1}")
    a("s_bcnt1_i32_b32 s63, s63")
    a("s_cmp_lg_u32 s63, 1")
    a(f"s_cselect_b32 s{S_MODE}, 1, 0")

def build_chain_test(cfg, path):
    a = Asm()
    entry(a)
    a(f"s_cmp_lt_u32 s{S_IDX}, 12")
    a("s_cbranch_scc1 L_chain")
    arrive(a)
    a.label("L_exit")
    a("s_endpgm")
    a.label("L_chain")
    chain.calibrate(a)
    if cfg.get("flip"): a(f"s_xor_b32 s{S_NEAR}, s{S_NEAR}, 8192")
    chain.gen_chain_init(a, cfg)
    chain.gen_chain_pre(a, cfg)
    arrive(a)
    a("s_waitcnt vmcnt(0)")
    chain.gen_weight_load(a)
    wait_all(a)
    if cfg.get("force_safe"): a(f"s_mov_b32 s{S_MODE}, 1")
    chain.gen_chain_main(a, cfg)
    open(path, "w").write(HEADER.format(k=KNAME) + a.text() + FOOTER.format(k=KNAME))


def build_full(cfg, path):
    cfg = dict(cfg)
    roles = cfg.get("roles", {"C","K","V","Q","O","F1","F2","E"})
    a = Asm()
    entry(a)
    a(f"s_mov_b32 s{S_MODE}, 1")
    bulk.own_flag_intra(a)
    a(f"s_mov_b32 s60, 0")
    lx = a.newlabel("fx"); ly = a.newlabel("fy")
    a(f"s_cmp_lt_u32 s{S_IDX}, 24")
    a(f"s_cbranch_scc1 {ly}")
    a(f"s_cmp_lt_u32 s{S_IDX}, 28")
    a(f"s_cbranch_scc0 {lx}")
    a(f"s_lshl_b32 s63, s{S_GRP}, 2")
    a(f"s_add_u32 s63, s63, s{S_IDX}")
    a(f"s_sub_u32 s63, s63, 24")
    a(f"s_lshl_b32 s63, s63, 2")
    a(f"s_add_u32 s{bulk.S_FLAG}, s63, {FLX}")
    a(f"s_branch {ly}")
    a.label(lx)
    a(f"s_sub_u32 s60, s2, 224")
    a(f"s_add_u32 s63, s60, 64")
    a(f"s_add_u32 s64, s60, 20")
    a(f"s_cmp_lt_u32 s60, 12")
    a(f"s_cselect_b32 s63, s63, s64")
    a(f"s_lshl_b32 s63, s63, 2")
    a(f"s_add_u32 s{bulk.S_FLAG}, s63, {FLX}")
    a.label(ly)
    bulk.flag_init(a, bulk.S_FLAG)
    if not cfg.get("noln"): bulk.gen_ln(a)
    a(f"s_cmp_lt_u32 s{S_IDX}, 12")
    a("s_cbranch_scc1 L_chain")
    arrive(a)
    a("s_waitcnt vmcnt(0)")
    for lim, lab in ((16, "L_k"), (20, "L_v"), (24, "L_q"), (28, "L_o")):
        a(f"s_cmp_lt_u32 s{S_IDX}, {lim}")
        a(f"s_cbranch_scc1 {lab}")
    a(f"s_cmp_lt_u32 s60, 12")
    a(f"s_cbranch_scc1 L_f1")
    a(f"s_cmp_lt_u32 s60, 22")
    a(f"s_cbranch_scc1 L_f2")
    a(f"s_branch L_e")
    a.label("L_exit")
    a("s_endpgm")
    def role(lab, name, pre, main):
        a.label(lab)
        if name not in roles:
            a("s_endpgm"); return
        pre()
        wait_all(a)
        if cfg.get("force_safe"): a(f"s_mov_b32 s{S_MODE}, 1")
        main()
    role("L_k", "K", lambda: bulk.gen_kv_pre(a, cfg, False), lambda: bulk.gen_kv_main(a, cfg, False))
    role("L_v", "V", lambda: bulk.gen_kv_pre(a, cfg, True), lambda: bulk.gen_kv_main(a, cfg, True))
    role("L_q", "Q", lambda: bulk.gen_q_pre(a, cfg), lambda: bulk.gen_q_main(a, cfg))
    role("L_o", "O", lambda: bulk.gen_o_pre(a, cfg), lambda: bulk.gen_o_main(a, cfg))
    role("L_f1", "F1", lambda: bulk.gen_f1_pre(a, cfg), lambda: bulk.gen_f1_main(a, cfg))
    def f2pre():
        a("s_sub_u32 s60, s60, 12"); bulk.gen_f2_pre(a, cfg)
    role("L_f2", "F2", f2pre, lambda: bulk.gen_f2_main(a, cfg))
    role("L_e", "E", lambda: a("s_sub_u32 s60, s60, 22"), lambda: bulk.gen_e_main(a, cfg))
    a.label("L_chain")
    if "C" not in roles:
        arrive(a); a("s_endpgm")
    else:
        if not cfg.get("nowait"):
            def kv_setup(a):
                a(f"s_lshl_b32 s63, s{S_GRP}, 8")
                a(f"s_lshl_b32 s64, s60, 2")
                a(f"s_add_u32 s63, s63, s64")
                a(f"s_add_u32 s63, s63, {FLI + 48}")
                a(f"v_min_u32 v0, 1, v1")
                a(f"v_lshlrev_b32 v0, 4, v0")
                a(f"v_add_u32 v0, s63, v0")
                a(f"s_mov_b32 s86, 0")
            def wait_kv(a, sseg):
                a(f"s_add_u32 s87, s{sseg}, 1")
                bulk.flag_wait(a, 0, 87, 86, 40, sleep=1)
            cfg["kv_setup"] = kv_setup; cfg["wait_kv"] = wait_kv
        cfg["pub"] = lambda a, sval: bulk.flag_set(a, bulk.S_FLAG, sval, True, 40, wave=4)
        a("s_waitcnt vmcnt(0)")
        chain.calibrate(a)
        chain.gen_chain_init(a, cfg)
        chain.gen_chain_pre(a, cfg)
        arrive(a)
        a("s_waitcnt vmcnt(0)")
        chain.gen_weight_load(a)
        wait_all(a)
        if cfg.get("force_safe"): a(f"s_mov_b32 s{S_MODE}, 1")
        chain.gen_chain_main(a, cfg)
    open(path, "w").write(HEADER.format(k=KNAME) + a.text() + FOOTER.format(k=KNAME))

if __name__ == "__main__":
    import sys, subprocess
    names = []
    def B(n, **kw):
        build_full(dict(kw), f"dev/{n}.s"); names.append(n)
        subprocess.run(["python3", "build.py", f"dev/{n}.s", KNAME, "14"])
    B("r_kvf1", roles={"K","V","F1"}, nowait=1)
    B("r_qf2", roles={"Q","F2"}, nowait=1)
    B("r_o", roles={"O"}, nowait=1)
    B("r_e", roles={"E"}, nowait=1)
    B("full", xdepth=3)
```

```python
import top, sys
from common import *
DST = "recurrent_scan__memory_aug_recurrent_mem_tr__glu_gated_bilinear__prompt.s"
def write(cfg, dst=DST):
    top.build_full(cfg, "_final.s")
    body = open("_final.s").read()
    ref = open(DST + ".ref").read()
    head = ref[:ref.index("; Override launch geometry")]
    body = body[body.index("; @launch"):]
    open(dst, "w").write(head + body)
if __name__ == "__main__":
    write(dict(rfirst=30, rsleep=4, psleep=32, xdelay=4, xdepth=2, mdelay=2, odelay=1))
```

```python
from common import *
from chain import st_intra, WSR, f32hex, C_EXP
import math

WR = f"s[{SRD_W}:{SRD_W+3}]"
FLAG_SPIN = 4000000
HOOK = None
CAL_WAIT = True
NOMFMA = False
NODMA = False

def wave_sum(a, v, t):
    for sh in (1, 2, 4, 8):
        a("s_nop 1")
        a(f"v_add_f32_dpp v{v}, v{v}, v{v} row_ror:{sh} row_mask:0xf bank_mask:0xf")
    for op in ("v_permlane16_swap_b32", "v_permlane32_swap_b32"):
        a(f"v_mov_b32 v{t}, v{v}")
        a("s_nop 1")
        a(f"{op} v{v}, v{t}")
        a(f"v_add_f32 v{v}, v{v}, v{t}")

def round_bf16(a, d, s):
    a(f"v_cvt_pk_bf16_f32 v{d}, v{s}, v{s}")
    a(f"v_and_b32 v{d}, 0xffff0000, v{d}")

def row_sum16(a, v):
    for sh in (1, 2, 4, 8):
        a("s_nop 1")
        a(f"v_add_f32_dpp v{v}, v{v}, v{v} row_ror:{sh} row_mask:0xf bank_mask:0xf")

def gen_ln(a):
    a.c("==== layernorm")
    srd(a, SRD_M, S_X, 2048*640*2)
    MR_ = f"s[{SRD_M}:{SRD_M+3}]"
    a(f"s_sub_u32 s63, s2, 160")
    a(f"s_lshl_b32 s63, s63, 3")
    a(f"s_add_u32 s63, s63, s{S_WAVE}")
    a(f"s_lshl_b32 s63, s63, 2")
    a(f"s_mul_i32 s64, s63, 1280")
    a(f"v_lshrrev_b32 v3, 4, v1")
    a(f"v_and_b32 v4, 15, v1")
    a(f"v_mul_u32_u24 v2, 1280, v3")
    a(f"v_lshlrev_b32 v5, 4, v4")
    a(f"v_add_u32 v2, v2, v5")
    IN, X, Y = 16, 40, 80
    for k in range(5):
        a(f"buffer_load_dwordx4 v[{IN+4*k}:{IN+4*k+3}], v2, {MR_}, s64 offen offset:{256*k}")
    a(f"v_lshrrev_b32 v5, 2, v4")
    a(f"v_lshlrev_b32 v5, 10, v5")
    a(f"v_and_b32 v6, 3, v4")
    a(f"v_lshlrev_b32 v6, 8, v6")
    a(f"v_lshlrev_b32 v3, 4, v3")
    a(f"v_add3_u32 v5, v5, v6, v3")
    a(f"s_lshr_b32 s64, s63, 4")
    a(f"s_mul_i32 s64, s64, {20*1024}")
    a(f"s_and_b32 s65, s63, 15")
    a(f"s_lshl_b32 s65, s65, 4")
    a(f"s_add_u32 s64, s64, s65")
    if XN: a(f"s_add_u32 s64, s64, {XN}")
    def unpack(dst, src):
        for k in range(20):
            a(f"v_lshlrev_b32 v{dst+2*k}, 16, v{src+k}")
            a(f"v_and_b32 v{dst+2*k+1}, 0xffff0000, v{src+k}")
    def pk(op, d, x, y, z=None):
        a(f"{op} v[{d}:{d+1}], v[{x}:{x+1}], v[{y}:{y+1}]" + (f", v[{z}:{z+1}]" if z is not None else ""))
    a("s_waitcnt vmcnt(0)")
    if TRACE:
        a("s_memrealtime s[94:95]")
        a("s_waitcnt lgkmcnt(0)")
    unpack(X, IN)
    pk("v_pk_add_f32", 8, X, X+2)
    for k in range(2, 20): pk("v_pk_add_f32", 8, 8, X+2*k)
    a(f"v_add_f32 v8, v8, v9")
    row_sum16(a, 8)
    a(f"v_mul_f32 v8, {f32hex(-1.0/640)}, v8")
    a(f"v_mov_b32 v9, v8")
    for k in range(20): pk("v_pk_add_f32", Y+2*k, X+2*k, 8)
    pk("v_pk_mul_f32", 10, Y, Y)
    for k in range(1, 20): pk("v_pk_fma_f32", 10, Y+2*k, Y+2*k, 10)
    a(f"v_add_f32 v10, v10, v11")
    row_sum16(a, 10)
    a(f"v_mul_f32 v10, {f32hex(1.0/640)}, v10")
    round_bf16(a, 10, 10)
    a(f"v_add_f32 v10, {f32hex(1e-5)}, v10")
    round_bf16(a, 10, 10)
    a(f"v_sqrt_f32 v10, v10")
    a("s_nop 0")
    round_bf16(a, 10, 10)
    a(f"v_rcp_f32 v12, v10")
    round_bf16(a, 8, 8)
    a(f"v_mov_b32 v9, v8")
    a(f"v_mov_b32 v13, v12")
    a(f"v_sub_f32 v10, 0, v10")
    a(f"v_mov_b32 v11, v10")
    for k in range(20): pk("v_pk_add_f32", Y+2*k, X+2*k, 8)
    for k in range(20): a(f"v_cvt_pk_bf16_f32 v{IN+k}, v{Y+2*k}, v{Y+2*k+1}")
    unpack(X, IN)
    for k in range(20):
        pk("v_pk_mul_f32", Y+2*k, X+2*k, 12)
        pk("v_pk_fma_f32", X+2*k, Y+2*k, 10, X+2*k)
        pk("v_pk_fma_f32", Y+2*k, X+2*k, 12, Y+2*k)
    for k in range(5):
        for j in range(4): a(f"v_cvt_pk_bf16_f32 v{IN+4*k+j}, v{Y+8*k+2*j}, v{Y+8*k+2*j+1}")
        a(f"buffer_store_dwordx4 v[{IN+4*k}:{IN+4*k+3}], v5, {WSR}, s64 offen sc1")
        a(f"s_add_u32 s64, s64, 4096")
    if TRACE:
        a("s_memrealtime s[96:97]")
        a("s_waitcnt lgkmcnt(0) vmcnt(0)")
        trace_pt(a, 106, 12)
        a(f"s_lshl_b32 s100, s2, 9")
        a(f"s_add_u32 s100, s100, {TSDBG + 104*4}")
        a(f"v_mov_b32 v12, 0")
        a(f"v_mov_b32 v14, s94")
        a(f"v_mov_b32 v15, s96")
        a(f"buffer_store_dwordx2 v[14:15], v12, {WSR}, s100 offen")

def calib_round(a, DSR, line0, dst, n=4):
    a(f"s_mov_b32 s63, {CAL + line0*128}")
    a(f"v_and_b32 v3, 7, v1")
    a(f"v_lshlrev_b32 v3, 7, v3")
    a(f"v_bfe_u32 v4, v1, 3, 1")
    a(f"v_lshlrev_b32 v4, 13, v4")
    a(f"v_add_u32 v3, v3, v4")
    a(f"buffer_store_dword v2, v3, {WSR}, s63 offen sc1")
    a("s_waitcnt vmcnt(0)")
    a("s_mov_b32 s70, -1")
    a("s_mov_b32 s71, -1")
    a(f"s_add_u32 s64, s63, 8192")
    for k in range(n):
        for par in range(2):
            a("s_memtime s[88:89]")
            a("s_waitcnt lgkmcnt(0)")
            a(f"buffer_load_dword v3, v2, {WSR}, s{63+par} offen offset:{128*k} sc1")
            a("s_waitcnt vmcnt(0)")
            a("s_memtime s[90:91]")
            a("s_waitcnt lgkmcnt(0)")
            a("s_sub_u32 s90, s90, s88")
            a(f"s_min_u32 s{70+par}, s{70+par}, s90")
    a("s_cmp_gt_u32 s70, s71")
    a("s_cselect_b32 s64, 2, 1")
    a("v_mov_b32 v3, s64")
    a(f"buffer_store_dword v3, v2, {DSR}, 0 offen offset:{dst} sc1")

def gen_calib(a, DSR):
    l = a.newlabel("ei")
    a(f"s_cmp_eq_u32 s2, 249")
    a(f"s_cbranch_scc0 {l}")
    a(f"s_cmp_eq_u32 s{S_WAVE}, 0")
    a(f"s_cbranch_scc0 {l}")
    a(f"v_mov_b32 v2, 0")
    calib_round(a, DSR, 0, 132, 4)
    a(f"s_mov_b32 s75, 1")
    lw = a.newlabel("cw"); ld = a.newlabel("cwd")
    a(f"s_mov_b32 s76, 1000000")
    a.label(lw)
    a(f"buffer_load_dword v3, v2, {DSR}, 0 offen offset:128 sc1")
    a(f"s_sub_u32 s76, s76, 1")
    a(f"s_cbranch_scc1 {ld}")
    a("s_waitcnt vmcnt(0)")
    a(f"v_readfirstlane_b32 s63, v3")
    a(f"s_cmp_lg_u32 s63, 0")
    a(f"s_cbranch_scc1 {ld}")
    a("s_sleep 16")
    a(f"s_branch {lw}")
    a.label(ld)
    a(f"v_mov_b32 v4, {FLI}")
    a(f"s_mov_b32 s77, 0")
    if CAL_WAIT: flag_wait(a, 4, 75, 77, 3, sleep=8, ahead=0)
    calib_round(a, DSR, 8, 136, 6)
    a.label(l)

def code_warm(a, lab_from, nbytes, v=2):
    l = a.newlabel("cwm")
    a("s_getpc_b64 s[88:89]")
    a.label(l)
    a(f"s_add_u32 s88, s88, {lab_from}-{l}")
    a(f"s_addc_u32 s89, s89, 0")
    a(f"v_lshlrev_b32 v{v}, 6, v1")
    for k in range((nbytes + 4095)//4096):
        a(f"global_load_dword v{v+1}, v{v}, s[88:89]")
        a(f"v_add_u32 v{v}, 4096, v{v}")

def gen_e_init(a, DSR):
    l = a.newlabel("ei")
    a(f"s_cmp_eq_u32 s{S_IDX}, 31")
    a(f"s_cbranch_scc0 {l}")
    srd(a, SRD_M, S_MEM0, 8*640*2)
    MR_ = f"s[{SRD_M}:{SRD_M+3}]"
    a(f"s_lshl_b32 s63, s{S_GRP}, 16")
    a(f"s_add_u32 s63, s63, {MR}")
    for k in range(2):
        a(f"v_add_u32 v2, {512*k}, v0")
        a(f"v_bfe_u32 v3, v2, 1, 3")
        a(f"v_mul_u32_u24 v3, 1280, v3")
        a(f"v_lshrrev_b32 v4, 4, v2")
        a(f"v_lshlrev_b32 v4, 5, v4")
        a(f"v_add_u32 v3, v3, v4")
        a(f"v_and_b32 v4, 1, v2")
        a(f"v_lshlrev_b32 v4, 4, v4")
        a(f"v_add_u32 v3, v3, v4")
        a(f"v_lshlrev_b32 v{5+k}, 4, v2")
        a(f"v_mov_b32 v4, {OOB}")
        a(f"v_cmp_gt_u32 vcc, 640, v2")
        a("s_nop 1")
        a(f"v_cndmask_b32 v3, v4, v3, vcc")
        a(f"v_cndmask_b32 v{5+k}, v4, v{5+k}, vcc")
        a(f"buffer_load_dwordx4 v[{16+4*k}:{19+4*k}], v3, {MR_}, 0 offen")
    a("s_waitcnt vmcnt(0)")
    for r in range(16, 24): a(f"v_min_u32 v{r}, -2, v{r}")
    for k in range(2):
        a(f"buffer_store_dwordx4 v[{16+4*k}:{19+4*k}], v{5+k}, {WSR}, s63 offen sc1")
    a.label(l)

def flag_init(a, soff):
    l = a.newlabel("fi")
    a(f"s_cmp_eq_u32 s{S_WAVE}, 0")
    a(f"s_cbranch_scc0 {l}")
    a(f"v_mov_b32 v2, 0")
    a(f"buffer_store_dword v2, v2, {WSR}, s{soff} offen sc1")
    a.label(l)

def flag_set(a, soff, sval, intra, vt, wave=0):
    l = a.newlabel("fs")
    a(f"s_cmp_eq_u32 s{S_WAVE}, {wave}")
    a(f"s_cbranch_scc0 {l}")
    a(f"v_mov_b32 v{vt}, 0")
    a(f"v_mov_b32 v{vt+1}, s{sval}")
    ins = f"buffer_store_dword v{vt+1}, v{vt}, {WSR}, s{soff} offen"
    if intra: st_intra(a, [ins])
    else: a(ins + " sc1")
    if TRACE: trace(a, sval, vt)
    a.label(l)

TRACE = False
def trace(a, sval, vt, const=None):
    a("s_memrealtime s[98:99]")
    a(f"s_lshl_b32 s100, s2, 9")
    if const is None:
        a(f"s_lshl_b32 s101, s{sval}, 2")
        a(f"s_add_u32 s100, s100, s101")
    else:
        a(f"s_add_u32 s100, s100, {const*4}")
    a(f"s_add_u32 s100, s100, {TSDBG}")
    a("s_waitcnt lgkmcnt(0)")
    a(f"v_mov_b32 v{vt+1}, s98")
    a(f"buffer_store_dword v{vt+1}, v{vt}, {WSR}, s100 offen")
    if TRACE == 2:
        a("s_memtime s[98:99]")
        a(f"s_add_u32 s100, s100, {512*512}")
        a("s_waitcnt lgkmcnt(0)")
        a(f"v_mov_b32 v{vt+1}, s98")
        a(f"buffer_store_dword v{vt+1}, v{vt}, {WSR}, s100 offen")

def trace_pt(a, const, vt=2):
    if not TRACE: return
    l = a.newlabel("tp")
    a(f"s_cmp_eq_u32 s{S_WAVE}, 0")
    a(f"s_cbranch_scc0 {l}")
    a(f"v_mov_b32 v{vt}, 0")
    trace(a, None, vt, const)
    a.label(l)

def flag_wait(a, voff, sneed, scache, vt, sleep=2, ahead=3, first=0):
    l = a.newlabel("fw"); d = a.newlabel("fwd")
    a(f"s_cmp_ge_u32 s{scache}, s{sneed}")
    a(f"s_cbranch_scc1 {d}")
    a(f"s_mov_b32 s76, {FLAG_SPIN}")
    a.label(l)
    a(f"buffer_load_dword v{vt}, v{voff}, {WSR}, 0 offen sc1")
    a(f"s_sub_u32 s76, s76, 1")
    a(f"s_cbranch_scc1 {d}")
    a("s_waitcnt vmcnt(0)")
    a(f"v_cmp_gt_u32 vcc, s{sneed}, v{vt}")
    l2 = a.newlabel("fwo")
    a(f"s_cbranch_vccz {l2}")
    if first:
        l3 = a.newlabel("fwf")
        a(f"s_cmp_eq_u32 s76, {FLAG_SPIN-1}")
        a(f"s_cbranch_scc0 {l3}")
        a(f"s_sleep {first}")
        a.label(l3)
    if sleep: a(f"s_sleep {sleep}")
    a(f"s_branch {l}")
    a.label(l2)
    if ahead == "exact":
        a(f"v_readfirstlane_b32 s{scache}, v{vt}")
    elif ahead == "min3":
        a(f"v_readlane_b32 s{scache}, v{vt}, 0")
        a(f"v_readlane_b32 s76, v{vt}, 1")
        a(f"s_min_u32 s{scache}, s{scache}, s76")
        a(f"v_readlane_b32 s76, v{vt}, 2")
        a(f"s_min_u32 s{scache}, s{scache}, s76")
    elif ahead:
        a(f"s_add_u32 s76, s{sneed}, {ahead}")
        a(f"v_cmp_gt_u32 vcc, s76, v{vt}")
        a(f"s_cmp_eq_u64 vcc, 0")
        a(f"s_cselect_b32 s{scache}, s76, s{sneed}")
    else:
        a(f"s_mov_b32 s{scache}, s{sneed}")
    a.label(d)

def flag_wait_w0(a, *args, **kw):
    l = a.newlabel("w0")
    a(f"s_cmp_eq_u32 s{S_WAVE}, 0")
    a(f"s_cbranch_scc0 {l}")
    flag_wait(a, *args, **kw)
    a.label(l)

def stage_weights(a, sptr, nbytes, RS, scol, R, NCH, batch_rows, nbuf, reader, vb=2):
    P = NCH // math.gcd(NCH, 64)
    RG = P*64 // NCH
    groups = batch_rows // RG
    assert batch_rows % RG == 0 and groups % 8 == 0 and R % batch_rows == 0
    gpw = groups // 8
    nb = R // batch_rows
    bbytes = batch_rows*NCH*16
    assert nbuf*bbytes <= 163840
    srd(a, SRD_W, sptr, nbytes)
    M = (65536 + NCH - 1)//NCH
    t0, t1 = vb+P, vb+P+1
    for k in range(P):
        for i in range(64*k, 64*k+64): assert (i*M) >> 16 == i // NCH
        a(f"v_add_u32 v{t0}, {64*k}, v1")
        a(f"v_mul_u32_u24 v{t1}, {M}, v{t0}")
        a(f"v_lshrrev_b32 v{t1}, 16, v{t1}")
        a(f"v_mul_u32_u24 v{vb+k}, {RS - NCH*16}, v{t1}")
        a(f"v_lshlrev_b32 v{t0}, 4, v{t0}")
        a(f"v_add_u32 v{vb+k}, v{vb+k}, v{t0}")
    def issue(b):
        a(f"s_mul_i32 s63, s{S_WAVE}, {P*1024}")
        a(f"s_add_u32 s63, s63, {(b % nbuf)*bbytes}")
        a(f"s_mul_i32 s64, s{S_WAVE}, {RG*RS}")
        a(f"s_add_u32 s64, s64, s{scol}")
        a(f"s_add_u32 s64, s64, {b*batch_rows*RS}")
        for q in range(gpw):
            for k in range(P):
                a(f"s_mov_b32 m0, s63")
                a(f"s_add_u32 s63, s63, {1024 if k < P-1 else 1024 + 7*P*1024}")
                a(f"buffer_load_dwordx4 v{vb+k}, {WR}, s64 offen lds")
            a(f"s_add_u32 s64, s64, {8*RG*RS}")
    per = gpw*P
    global HOOK
    for b in range(min(nbuf, nb)):
        issue(b)
        if HOOK:
            a(f"s_waitcnt vmcnt({per})")
            a("s_barrier")
            HOOK(); HOOK = None
    for b in range(nb):
        out = (min(nb, b+nbuf) - b - 1)*per
        a(f"s_waitcnt vmcnt({min(out, 63)})")
        a("s_barrier")
        reader(b*batch_rows, (b % nbuf)*bbytes)
        a("s_waitcnt lgkmcnt(0)")
        a("s_barrier")
        if b + nbuf < nb: issue(b+nbuf)

def tr_base(a, vd, pitch, rowg, colq, vt):
    a(f"v_lshrrev_b32 v{vt}, 4, v1")
    a(f"v_mul_u32_u24 v{vd}, {rowg*pitch}, v{vt}")
    a(f"v_bfe_u32 v{vt}, v1, 2, 2")
    a(f"v_mul_u32_u24 v{vt}, {pitch}, v{vt}")
    a(f"v_add_u32 v{vd}, v{vd}, v{vt}")
    a(f"v_and_b32 v{vt}, 3, v1")
    a(f"v_mul_u32_u24 v{vt}, {colq}, v{vt}")
    a(f"v_add_u32 v{vd}, v{vd}, v{vt}")

def make_reader(a, vaddr, vtmp, classes, pitch, batch_rows, rowh):
    def reader(row0, lbase):
        for (skip, tiles) in classes:
            l = a.newlabel("rd")
            skip(l)
            a(f"v_add_u32 v{vtmp}, {lbase}, v{vaddr}")
            n = 0
            for ksl in range(batch_rows//32):
                ks = row0//32 + ksl
                for (wb, co) in tiles:
                    for h in range(2):
                        off = (32*ksl + rowh*h)*pitch + co
                        assert off < 65536
                        d = wb + ks*4 + 2*h
                        a(f"ds_read_b64_tr_b16 v[{d}:{d+1}], v{vtmp} offset:{off}")
                        n += 1
                        if n % 8 == 0: a("s_waitcnt lgkmcnt(6)")
            a.label(l)
    return reader

def skip_if_small(a):
    def f(l):
        a(f"s_cmp_lt_u32 s{S_WAVE}, 4"); a(f"s_cbranch_scc0 {l}")
    return f
def skip_if_big(a):
    def f(l):
        a(f"s_cmp_lt_u32 s{S_WAVE}, 4"); a(f"s_cbranch_scc1 {l}")
    return f

def gemm_unit(a, KS, tiles, accs, FR, NF, vlds, lds_off0, w_is_A, extras=None):
    def rd(ks): a(f"ds_read_b128 v[{FR+4*(ks%NF)}:{FR+4*(ks%NF)+3}], v{vlds} offset:{lds_off0+ks*1024}")
    for ks in range(min(NF, KS)): rd(ks)
    for ks in range(KS):
        outstanding = min(KS, ks+NF) - ks - 1
        a(f"s_waitcnt lgkmcnt({outstanding})")
        f = f"v[{FR+4*(ks%NF)}:{FR+4*(ks%NF)+3}]"
        for t, acc in zip(tiles, accs):
            w = f"v[{t+4*ks}:{t+4*ks+3}]"
            c = "0" if ks == 0 else f"v[{acc}:{acc+3}]"
            A_, B_ = (w, f) if w_is_A else (f, w)
            if not NOMFMA: a(f"v_mfma_f32_16x16x32_bf16 v[{acc}:{acc+3}], {A_}, {B_}, {c}")
            else: a("s_nop 3")
        if ks + NF < KS: rd(ks+NF)
        if extras and ks in extras: extras[ks]()

def gemm_stream(a, KS, tiles, units, FR, NF, vlds, w_is_A, extras=None):
    steps = [(u, ks) for u in range(len(units)) for ks in range(KS)]
    N = len(steps)
    def rd(i):
        u, ks = steps[i]
        a(f"ds_read_b128 v[{FR+4*(i%NF)}:{FR+4*(i%NF)+3}], v{vlds} offset:{units[u][1]+ks*1024}")
    for i in range(min(NF, N)): rd(i)
    for i, (u, ks) in enumerate(steps):
        a(f"s_waitcnt lgkmcnt({min(N, i+NF) - i - 1})")
        f = f"v[{FR+4*(i%NF)}:{FR+4*(i%NF)+3}]"
        for t, acc in zip(tiles, units[u][0]):
            w = f"v[{t+4*ks}:{t+4*ks+3}]"
            c = "0" if ks == 0 else f"v[{acc}:{acc+3}]"
            A_, B_ = (w, f) if w_is_A else (f, w)
            a(f"v_mfma_f32_16x16x32_bf16 v[{acc}:{acc+3}], {A_}, {B_}, {c}")
        if i + NF < N: rd(i+NF)
        if extras and i in extras: extras[i]()

def dma_stream(a, ssrc, sdst, step=8192):
    def one():
        a(f"s_mov_b32 m0, s{sdst}")
        a(f"s_add_u32 s{sdst}, s{sdst}, {step}")
        if not NODMA: a(f"buffer_load_dwordx4 v7, {WSR}, s{ssrc} offen sc1 lds")
        a(f"s_add_u32 s{ssrc}, s{ssrc}, {step}")
    return one

FR, NF, ACC = 16, 8, 48
NF1, NF2, NE = 3, 5, 6
S_FLAG = 8
S_U = 73

def kv_flag_addr(a, v):
    a(f"s_lshl_b32 s63, s60, 3")
    a(f"s_add_u32 s63, s63, s{S_GRP}")
    a(f"s_lshl_b32 s63, s63, 7")
    a(f"s_add_u32 s63, s63, {FLX + 96*128}")
    a(f"v_min_u32 v{v}, 1, v1")
    a(f"v_lshlrev_b32 v{v}, 12, v{v}")
    a(f"v_add_u32 v{v}, s63, v{v}")

def st_cross(a, instr):
    if NODMA: return
    for i in instr: a(i + " sc1")

def own_flag_intra(a):
    a(f"s_lshl_b32 s{S_FLAG}, s{S_GRP}, 8")
    a(f"s_lshl_b32 s63, s{S_IDX}, 2")
    a(f"s_add_u32 s{S_FLAG}, s{S_FLAG}, s63")
    a(f"s_add_u32 s{S_FLAG}, s{S_FLAG}, {FLI}")

def dma_frags(a, n_per_wave, ssrc, sdst, stride_waves=True, flags="sc1"):
    a(f"s_lshl_b32 s63, s{S_WAVE}, 10")
    a(f"s_add_u32 s64, s63, s{ssrc}")
    a(f"s_add_u32 s63, s63, s{sdst}")
    for k in range(n_per_wave):
        a(f"s_mov_b32 m0, s63")
        a(f"s_add_u32 s63, s63, 8192")
        if not NODMA: a(f"buffer_load_dwordx4 v7, {WSR}, s64 offen {flags} lds")
        a(f"s_add_u32 s64, s64, 8192")

def proj_weights(a, sptr, ktype, shead):
    W0, W1 = 96, 176
    a(f"s_mul_i32 s62, s{shead}, 384")
    tr_base(a, 10, 384, 8, 16 if ktype else 8, 11)
    l1 = a.newlabel("pw"); l2 = a.newlabel("pw")
    a(f"s_cmp_lt_u32 s{S_WAVE}, 4")
    a(f"s_cbranch_scc0 {l1}")
    a(f"s_lshl_b32 s63, s{S_WAVE}, 6")
    a(f"s_branch {l2}")
    a.label(l1)
    a(f"s_sub_u32 s64, s{S_WAVE}, 4")
    if ktype:
        a(f"s_lshr_b32 s63, s64, 1")
        a(f"s_lshl_b32 s63, s63, 6")
        a(f"s_and_b32 s64, s64, 1")
        a(f"s_lshl_b32 s64, s64, 3")
        a(f"s_add_u32 s63, s63, s64")
    else:
        a(f"s_lshl_b32 s63, s64, 5")
    a(f"s_add_u32 s63, s63, 256")
    a.label(l2)
    a(f"v_add_u32 v10, s63, v10")
    rd = make_reader(a, 10, 11, [(skip_if_small(a), [(W0, 0), (W1, 8 if ktype else 32)]), (skip_if_big(a), [(W0, 0)])], 384, 128, 4)
    stage_weights(a, sptr, 640*6144*2, 12288, 62, 640, 24, 128, 3, rd)

def xn_loop(a, cfg, body_big, ns_big, body_small, ns_small, sfirst, stride, strict, done, pre_bar=None):
    SB = 40*1024
    split = body_small is not None and cfg.get("dmasmall", 0)
    a(f"v_lshlrev_b32 v7, 4, v1")
    if sfirst is None: a(f"s_mov_b32 s{S_U}, 0")
    else: a(f"s_mov_b32 s{S_U}, s{sfirst}")
    a(f"s_mul_i32 s70, s{S_U}, {SB}")
    if XN: a(f"s_add_u32 s70, s70, {XN}")
    a(f"s_mov_b32 s71, 0")
    dma_frags(a, 5, 70, 71)
    a(f"s_add_u32 s70, s70, {stride*SB}")
    a(f"s_mov_b32 s71, {SB}")
    dma_frags(a, 5, 70, 71)
    a(f"s_mov_b32 s79, 0")
    a(f"s_mov_b32 s80, {2*SB}")
    if body_small is not None and cfg.get("kprio", 1):
        lp = a.newlabel("xp")
        a(f"s_cmp_lt_u32 s{S_WAVE}, 4")
        a(f"s_cbranch_scc0 {lp}")
        a("s_setprio 1")
        a.label(lp)
    else:
        a("s_setprio 0")
    sm = a.newlabel("xs"); st_ = a.newlabel("xst"); bar = a.newlabel("xb")
    a("s_waitcnt vmcnt(5)")
    a(f"s_mov_b32 s78, s{S_U}")
    a(f"s_branch {bar}")
    a.label(st_)
    a("s_waitcnt vmcnt(0)")
    a(f"s_mov_b32 s78, s{S_U}")
    a.label(bar)
    a("s_barrier")
    flag_set(a, S_FLAG, 78, False, 2)
    a(f"s_cmp_ge_u32 s{S_U}, 64")
    a(f"s_cbranch_scc1 {done}")
    if pre_bar:
        pre_bar()
        a("s_barrier")
    a(f"s_add_u32 s72, s{S_U}, {2*stride}")
    a(f"s_min_u32 s72, s72, 63")
    a(f"s_mul_i32 s70, s72, {SB}")
    if split:
        a(f"s_and_b32 s63, s{S_WAVE}, 3")
        a(f"s_lshl_b32 s63, s63, 10")
    else:
        a(f"s_lshl_b32 s63, s{S_WAVE}, 10")
    a(f"s_add_u32 s70, s70, s63")
    if XN: a(f"s_add_u32 s70, s70, {XN}")
    a(f"v_add_u32 v8, s79, v7")
    a(f"s_add_u32 s71, s80, s63")
    a(f"s_mov_b32 s80, s79")
    a(f"s_add_u32 s79, s79, {SB}")
    a(f"s_cmp_eq_u32 s79, {3*SB}")
    a(f"s_cselect_b32 s79, 0, s79")
    if split:
        xs = dma_stream(a, 70, 71, 4096)
        ex = None; nd_big = 0
        exs = {1+3*k: xs for k in range(10)}; nd_small = 10
    else:
        xs = dma_stream(a, 70, 71)
        ex = exs = {1+6*k: xs for k in range(5)}; nd_big = nd_small = 5
    def tail(n):
        a(f"s_mov_b32 s78, s{S_U}")
        a(f"s_add_u32 s{S_U}, s{S_U}, {stride}")
        a(f"s_cmp_ge_u32 s{S_U}, 64")
        a(f"s_cbranch_scc1 {st_}")
        if strict:
            a(f"s_cmp_lt_u32 s{S_U}, {strict}")
            a(f"s_cbranch_scc1 {st_}")
        a(f"s_waitcnt vmcnt({n})")
        a(f"s_branch {bar}")
    if body_small is not None:
        a(f"s_cmp_lt_u32 s{S_WAVE}, 4")
        a(f"s_cbranch_scc0 {sm}")
    body_big(ex)
    tail(ns_big + nd_big)
    if body_small is not None:
        a.label(sm)
        body_small(exs)
        tail(ns_small + nd_small)

def cvt4(a, d, s0, s1):
    a(f"v_cvt_pk_bf16_f32 v{d}, v{s0}, v{s0+1}")
    a(f"v_cvt_pk_bf16_f32 v{d+1}, v{s0+2}, v{s0+3}")
    a(f"v_cvt_pk_bf16_f32 v{d+2}, v{s1}, v{s1+1}")
    a(f"v_cvt_pk_bf16_f32 v{d+3}, v{s1+2}, v{s1+3}")

def gen_kv_pre(a, cfg, isV):
    a(f"s_sub_u32 s60, s{S_IDX}, {16 if isV else 12}")
    a(f"s_lshl_b32 s61, s{S_GRP}, 2")
    a(f"s_add_u32 s61, s61, s60")
    proj_weights(a, S_WV if isV else S_WK, 0 if isV else 1, 61)

def gen_kv_main(a, cfg, isV, done):
    W0, W1 = 96, 176
    O_ = 64
    a(f"v_lshlrev_b32 v7, 4, v1")
    a(f"s_mul_i32 s63, s61, {12*1024}")
    a(f"s_add_u32 s63, s63, {VF if isV else KF}")
    l1 = a.newlabel("kv"); l2 = a.newlabel("kv")
    a(f"s_cmp_lt_u32 s{S_WAVE}, 4")
    a(f"s_cbranch_scc0 {l1}")
    a(f"s_lshl_b32 s64, s{S_WAVE}, {11 if isV else 10}")
    a(f"s_branch {l2}")
    a.label(l1)
    a(f"s_sub_u32 s65, s{S_WAVE}, 4")
    if isV:
        a(f"s_add_u32 s64, s65, 8")
        a(f"s_lshl_b32 s64, s64, 10")
    else:
        a(f"s_lshr_b32 s64, s65, 1")
        a(f"s_add_u32 s64, s64, 4")
        a(f"s_lshl_b32 s64, s64, 10")
        a(f"s_and_b32 s65, s65, 1")
        a(f"s_lshl_b32 s65, s65, 3")
        a(f"s_add_u32 s64, s64, s65")
    a.label(l2)
    a(f"s_add_u32 s63, s63, s64")
    a(f"v_add_u32 v9, s63, v7")
    a(f"v_add_u32 v10, {6*1024}, v9")
    def big(ex):
        a(f"s_mul_i32 s74, s{S_U}, {32*12*1024}")
        gemm_stream(a, 20, [W0, W1], [([ACC+8*tt, ACC+8*tt+4], tt*20480) for tt in range(2)], FR, NF, 8, not isV, ex)
        a("s_nop 7")
        if isV:
            cvt4(a, O_, ACC, ACC+8); cvt4(a, O_+4, ACC+4, ACC+12)
            st_cross(a, [f"buffer_store_dwordx4 v[{O_}:{O_+3}], v9, {WSR}, s74 offen",
                         f"buffer_store_dwordx4 v[{O_+4}:{O_+7}], v9, {WSR}, s74 offen offset:1024"])
        else:
            cvt4(a, O_, ACC, ACC+4); cvt4(a, O_+4, ACC+8, ACC+12)
            st_cross(a, [f"buffer_store_dwordx4 v[{O_}:{O_+3}], v9, {WSR}, s74 offen",
                         f"buffer_store_dwordx4 v[{O_+4}:{O_+7}], v10, {WSR}, s74 offen"])
    def small(ex):
        a(f"s_mul_i32 s74, s{S_U}, {32*12*1024}")
        gemm_stream(a, 20, [W0], [([ACC+4*tt], tt*20480) for tt in range(2)], FR, NF, 8, not isV, ex)
        a("s_nop 7")
        cvt4(a, O_, ACC, ACC+4)
        if isV:
            st_cross(a, [f"buffer_store_dwordx4 v[{O_}:{O_+3}], v9, {WSR}, s74 offen"])
        else:
            st_cross(a, [f"buffer_store_dwordx2 v[{O_}:{O_+1}], v9, {WSR}, s74 offen",
                         f"buffer_store_dwordx2 v[{O_+2}:{O_+3}], v10, {WSR}, s74 offen"])
    pre = None
    if cfg.get("lead"):
        a(f"s_lshl_b32 s63, s60, 3")
        a(f"s_add_u32 s63, s63, s{S_GRP}")
        a(f"s_lshl_b32 s63, s63, 7")
        a(f"s_add_u32 s63, s63, {FLX + 160*128}")
        a(f"v_mov_b32 v11, s63")
        a(f"s_mov_b32 s77, 0")
        def pre():
            a(f"s_max_u32 s75, s{S_U}, {cfg['lead']}")
            a(f"s_sub_u32 s75, s75, {cfg['lead']}")
            flag_wait_w0(a, 11, 75, 77, 2, sleep=8, ahead=0)
    xn_loop(a, cfg, big, 2, small, 1 if isV else 2, None, 1, 4, done, pre_bar=pre)

def gen_f1_pre(a, cfg):
    W0, W1 = 96, 176
    a(f"s_lshl_b32 s62, s60, 8")
    for (ptr, wb) in ((S_WG, W0), (S_WU, W1)):
        tr_base(a, 10, 256, 8, 8, 11)
        a(f"s_lshl_b32 s63, s{S_WAVE}, 5")
        a(f"v_add_u32 v10, s63, v10")
        rd = make_reader(a, 10, 11, [(lambda l: None, [(wb, 0)])], 256, 160, 4)
        stage_weights(a, ptr, 640*1536*2, 3072, 62, 640, 16, 160, 4, rd)

def gen_f1_main(a, cfg, done):
    W0, W1 = 96, 176
    O_ = 64
    a(f"v_lshlrev_b32 v7, 4, v1")
    a(f"s_lshl_b32 s63, s60, 2")
    a(f"s_lshr_b32 s64, s{S_WAVE}, 1")
    a(f"s_add_u32 s63, s63, s64")
    a(f"s_lshl_b32 s63, s63, 10")
    a(f"s_and_b32 s64, s{S_WAVE}, 1")
    a(f"s_lshl_b32 s64, s64, 3")
    a(f"s_add_u32 s63, s63, s64")
    a(f"s_add_u32 s63, s63, {HF}")
    a(f"v_add_u32 v9, s63, v7")
    a(f"v_add_u32 v10, {48*1024}, v9")
    def body(ex):
        a(f"s_mul_i32 s74, s{S_U}, {96*1024}")
        gemm_stream(a, 20, [W0, W1], [([ACC+8*tt, ACC+8*tt+4], tt*20480) for tt in range(2)], FR, NF, 8, True, ex)
        a("s_nop 7")
        for k in range(16): round_bf16(a, ACC+k, ACC+k)
        for tt in range(2):
            for r in range(4): a(f"v_mul_f32 v{ACC+8*tt+r}, v{ACC+8*tt+r}, v{ACC+8*tt+4+r}")
        cvt4(a, O_, ACC, ACC+8)
        a(f"buffer_store_dwordx2 v[{O_}:{O_+1}], v9, {WSR}, s74 offen sc1")
        a(f"buffer_store_dwordx2 v[{O_+2}:{O_+3}], v10, {WSR}, s74 offen sc1")
    xn_loop(a, cfg, body, 2, None, 0, 9, NF1, 2*NF1, done)

def gen_f2_pre(a, cfg):
    a(f"s_lshl_b32 s62, s61, 8")
    tr_base(a, 10, 256, 4, 8, 11)
    a(f"s_lshl_b32 s63, s{S_WAVE}, 5")
    a(f"v_add_u32 v10, s63, v10")
    rd = make_reader(a, 10, 11, [(lambda l: None, [(64, 0)])], 256, 192, 16)
    stage_weights(a, S_WD, 1536*640*2, 1280, 62, 1536, 16, 192, 3, rd)

def gen_f2_main(a, cfg, done):
    a(f"v_lshlrev_b32 v7, 4, v1")
    a(f"v_lshlrev_b32 v9, 3, v1")
    a(f"s_lshl_b32 s63, s61, 3")
    a(f"s_add_u32 s63, s63, s{S_WAVE}")
    a(f"s_lshl_b32 s63, s63, 9")
    a(f"s_add_u32 s63, s63, {GB}")
    a(f"v_add_u32 v9, s63, v9")
    a(f"v_min_u32 v11, {12*NF1-1}, v1")
    a(f"v_lshlrev_b32 v11, 7, v11")
    a(f"v_add_u32 v11, {FL2}, v11")
    a(f"s_mov_b32 s77, 0")
    def need(stile):
        a(f"s_lshr_b32 s75, s{stile}, 1")
        a(f"s_add_u32 s75, s75, 1")
        if not cfg.get("nowait"): flag_wait_w0(a, 11, 75, 77, 12, sleep=4, ahead=0)
    a(f"s_lshl_b32 s{S_U}, s9, 1")
    a(f"s_mov_b32 s71, 0")
    a(f"s_mov_b32 s79, 0")
    need(S_U)
    a("s_barrier")
    a(f"s_mul_i32 s70, s{S_U}, {48*1024}")
    a(f"s_add_u32 s70, s70, {HF}")
    dma_frags(a, 6, 70, 71)
    top = a.newlabel("f2")
    a.label(top)
    a(f"s_and_b32 s63, s{S_U}, 1")
    a(f"s_mul_i32 s63, s63, {2*NF2-2}")
    a(f"s_add_u32 s72, s{S_U}, s63")
    a(f"s_add_u32 s72, s72, 1")
    a(f"s_min_u32 s80, s72, 127")
    a("s_waitcnt vmcnt(0)")
    need(80)
    a("s_barrier")
    a(f"s_lshr_b32 s78, s{S_U}, 1")
    flag_set(a, S_FLAG, 78, False, 2)
    a(f"s_cmp_ge_u32 s{S_U}, 128")
    a(f"s_cbranch_scc1 {done}")
    a(f"v_add_u32 v8, s79, v7")
    a(f"s_xor_b32 s79, s79, {48*1024}")
    a(f"s_lshl_b32 s63, s{S_WAVE}, 10")
    a(f"s_add_u32 s71, s79, s63")
    a(f"s_mul_i32 s70, s80, {48*1024}")
    a(f"s_add_u32 s70, s70, s63")
    a(f"s_add_u32 s70, s70, {HF}")
    xs = dma_stream(a, 70, 71)
    a(f"s_mul_i32 s74, s{S_U}, {40*512}")
    gemm_unit(a, 48, [64], [ACC], FR, NF, 8, 0, True, {1: xs, 5: xs, 9: xs, 13: xs, 17: xs, 21: xs})
    a("s_nop 7")
    for r in range(4):
        y, t = ACC+r, ACC+4+r
        round_bf16(a, y, y)
        a(f"v_mul_f32 v{t}, {f32hex(-math.log2(math.e))}, v{y}")
        a(f"v_exp_f32 v{t}, v{t}")
        a("s_nop 0")
        a(f"v_add_f32 v{t}, 1.0, v{t}")
        a(f"v_rcp_f32 v{t}, v{t}")
        a("s_nop 0")
        a(f"v_mul_f32 v{y}, v{y}, v{t}")
    a(f"v_cvt_pk_bf16_f32 v{ACC+8}, v{ACC}, v{ACC+1}")
    a(f"v_cvt_pk_bf16_f32 v{ACC+9}, v{ACC+2}, v{ACC+3}")
    a(f"buffer_store_dwordx2 v[{ACC+8}:{ACC+9}], v9, {WSR}, s74 offen sc1")
    a(f"s_mov_b32 s{S_U}, s72")
    a(f"s_branch {top}")

LQ_Q = 81920
LQ_K = LQ_Q + 24576

def gen_q_pre(a, cfg):
    a(f"s_sub_u32 s60, s{S_IDX}, 20")
    a(f"s_lshl_b32 s61, s{S_GRP}, 2")
    a(f"s_add_u32 s61, s61, s60")
    proj_weights(a, S_WQ, 1, 61)

def qstamp(a, cfg, k, at=30):
    if not cfg.get("qts"): return
    l = a.newlabel("qt")
    a(f"s_cmp_eq_u32 s{S_U}, {at}")
    a(f"s_cbranch_scc0 {l}")
    a(f"s_memtime s[100:101]")
    a("s_waitcnt lgkmcnt(0)")
    a(f"s_mov_b32 s{90+k}, s100")
    a.label(l)

def gen_q_main(a, cfg):
    W0, W1 = 96, 176
    O_ = 64
    wait = not cfg.get("nowait")
    a(f"v_lshlrev_b32 v7, 4, v1")
    l1 = a.newlabel("q"); l2 = a.newlabel("q")
    a(f"s_cmp_lt_u32 s{S_WAVE}, 4")
    a(f"s_cbranch_scc0 {l1}")
    a(f"s_lshl_b32 s64, s{S_WAVE}, 10")
    a(f"s_branch {l2}")
    a.label(l1)
    a(f"s_sub_u32 s65, s{S_WAVE}, 4")
    a(f"s_lshr_b32 s64, s65, 1")
    a(f"s_add_u32 s64, s64, 4")
    a(f"s_lshl_b32 s64, s64, 10")
    a(f"s_and_b32 s65, s65, 1")
    a(f"s_lshl_b32 s65, s65, 3")
    a(f"s_add_u32 s64, s64, s65")
    a.label(l2)
    a(f"s_add_u32 s64, s64, {LQ_Q}")
    a(f"v_add_u32 v9, s64, v7")
    kv_flag_addr(a, 10)
    a(f"s_lshl_b32 s63, s61, 7")
    a(f"s_add_u32 s63, s63, {KMF}")
    a(f"v_min_u32 v11, 2, v1")
    a(f"v_lshlrev_b32 v11, 2, v11")
    a(f"v_add_u32 v11, s63, v11")
    a(f"s_mov_b32 s77, 0")
    a(f"s_mov_b32 s78, {100 if cfg.get('nowait') else 0}")
    a(f"s_and_b32 s79, s{S_WAVE}, 1")
    a(f"s_bfe_u32 s80, s{S_WAVE}, 0x10001")
    a(f"v_lshrrev_b32 v12, 4, v1")
    a(f"v_lshlrev_b32 v12, 2, v12")
    a(f"v_and_b32 v13, 15, v1")
    for r in range(4):
        a(f"v_add_u32 v14, {r}, v12")
        a(f"v_cmp_gt_u32 s[{82+2*r}:{83+2*r}], v14, v13")
    a(f"s_mul_i32 s63, s79, 6144")
    a(f"s_add_u32 s63, s63, {LQ_Q}")
    a(f"v_add_u32 v12, s63, v7")
    a(f"s_mul_i32 s63, s80, 6144")
    a(f"s_add_u32 s63, s63, {LQ_K + 12288}")
    a(f"v_add_u32 v13, s63, v7")
    a(f"s_mul_i32 s63, s61, 3072")
    a(f"s_mul_i32 s64, s80, 1536")
    a(f"s_add_u32 s63, s63, s64")
    a(f"s_add_u32 s63, s63, {VM2}")
    a(f"v_lshlrev_b32 v14, 2, v1")
    a(f"v_add_u32 v14, s63, v14")
    a(f"s_lshl_b32 s63, s79, 5")
    a(f"s_add_u32 s63, s63, s61")
    a(f"s_mul_i32 s63, s63, 6144")
    a(f"s_mul_i32 s64, s80, 3072")
    a(f"s_add_u32 s63, s63, s64")
    a(f"s_add_u32 s63, s63, {OF}")
    a(f"v_add_u32 v15, s63, v7")
    a(f"v_add_u32 v6, {LQ_K}, v7")
    a(f"s_mul_i32 s63, s61, 6144")
    a(f"s_add_u32 s63, s63, {KM2}")
    a(f"v_add_u32 v5, s63, v7")
    a(f"v_mov_b32 v4, {OOB}")
    a(f"v_and_b32 v2, 2, v1")
    a(f"v_cmp_eq_u32 vcc, 0, v2")
    a("s_nop 1")
    a(f"v_cndmask_b32 v5, v4, v5, vcc")
    a(f"v_add_u32 v4, 4096, v5")
    a(f"s_mov_b32 s81, {f32hex(C_EXP)}")
    lpr = a.newlabel("qp")
    a(f"s_cmp_lt_u32 s{S_WAVE}, 4")
    a(f"s_cbranch_scc1 {lpr}")
    a(f"s_setprio {cfg.get('qprio', 2)}")
    a.label(lpr)
    a(f"s_mov_b32 s{S_U}, 0")
    a(f"s_mov_b32 s70, {XN}")
    a(f"s_mov_b32 s71, 0")
    dma_frags(a, 5, 70, 71)
    top = a.newlabel("ql"); sm = a.newlabel("qs"); jn = a.newlabel("qj"); att = a.newlabel("qa"); fin = a.newlabel("qf")
    a.label(top)
    if wait:
        a(f"s_add_u32 s75, s{S_U}, 1")
        a(f"s_min_u32 s75, s75, 64")
        flag_wait_w0(a, 10, 75, 77, 2)
    a("s_waitcnt vmcnt(0) lgkmcnt(0)")
    a("s_barrier")
    qstamp(a, cfg, 0); qstamp(a, cfg, 9, 31)
    a(f"s_max_u32 s75, s{S_U}, 1")
    a(f"s_sub_u32 s75, s75, 1")
    flag_set(a, S_FLAG, 75, True, 2)
    a(f"s_cmp_eq_u32 s{S_U}, 65")
    a(f"s_cbranch_scc1 {fin}")
    a(f"s_and_b32 s72, s{S_U}, 1")
    a(f"s_mov_b32 s69, 0")
    a(f"s_cmp_eq_u32 s{S_U}, 64")
    lnp = a.newlabel("qnp")
    a(f"s_cbranch_scc1 {lnp}")
    a(f"s_add_u32 s74, s{S_U}, 1")
    a(f"s_min_u32 s74, s74, 63")
    a(f"s_mul_i32 s70, s74, {40*1024}")
    a(f"s_lshl_b32 s63, s{S_WAVE}, 10")
    a(f"s_add_u32 s70, s70, s63")
    if XN: a(f"s_add_u32 s70, s70, {XN}")
    a(f"s_mul_i32 s64, s72, {40*1024}")
    a(f"v_add_u32 v8, s64, v7")
    a(f"s_xor_b32 s71, s64, {40*1024}")
    a(f"s_add_u32 s71, s71, s63")
    a(f"s_mul_i32 s64, s72, 12288")
    a(f"v_add_u32 v3, s64, v9")
    a(f"s_cmp_lt_u32 s{S_WAVE}, 4")
    a(f"s_cbranch_scc0 {sm}")
    a(f"s_lshl_b32 s74, s{S_U}, 5")
    a(f"s_add_u32 s74, s74, s61")
    a(f"s_mul_i32 s74, s74, 12288")
    a(f"s_add_u32 s74, s74, s63")
    a(f"s_add_u32 s64, s74, {VF}")
    a(f"s_add_u32 s74, s74, {KF}")
    a(f"s_mul_i32 s65, s72, 24576")
    a(f"s_add_u32 s65, s65, s63")
    a(f"s_add_u32 s65, s65, {LQ_K}")
    xs = dma_stream(a, 70, 71, 4096); ks_ = dma_stream(a, 74, 65, 4096); vs_ = dma_stream(a, 64, 65, 4096)
    ex = {cfg.get("qsp", 1)*k: f for k, f in enumerate([ks_]*3 + [vs_]*3 + [xs]*10)}
    if cfg.get("qsp") == 0:
        for f in [ks_]*3 + [vs_]*3 + [xs]*10: f()
        ex = None
    gemm_stream(a, 20, [W0, W1], [([ACC+8*tt, ACC+8*tt+4], tt*20480) for tt in range(2)], FR, NF, 8, True, ex)
    a("s_nop 7")
    cvt4(a, O_, ACC, ACC+4); cvt4(a, O_+4, ACC+8, ACC+12)
    a(f"ds_write_b128 v3, v[{O_}:{O_+3}]")
    a(f"ds_write_b128 v3, v[{O_+4}:{O_+7}] offset:6144")
    qstamp(a, cfg, 1)
    a(f"s_branch {jn}")
    a.label(sm)
    KMR, VMR = 212, 200
    def km_loads():
        a(f"s_sub_u32 s75, s{S_U}, 1")
        a(f"s_mul_i32 s68, s75, {32*6144}")
        for ks in range(6):
            a(f"buffer_load_dwordx4 v[{KMR+4*ks}:{KMR+4*ks+3}], v{5 if ks < 4 else 4}, {WSR}, s68 offen offset:{(ks%4)*1024} sc1")
        a(f"s_lshr_b32 s75, s68, 1")
        for t in range(6):
            a(f"buffer_load_dword v{VMR+2*t}, v14, {WSR}, s75 offen offset:{t*256} sc1")
    lne = a.newlabel("qne")
    a(f"s_cmp_eq_u32 s{S_U}, 0")
    a(f"s_cbranch_scc1 {lne}")
    a(f"s_cmp_ge_u32 s78, s{S_U}")
    a(f"s_cbranch_scc0 {lne}")
    km_loads()
    a(f"s_mov_b32 s69, 1")
    a.label(lne)
    gemm_stream(a, 20, [W0], [([ACC+4*tt], tt*20480) for tt in range(2)], FR, NF, 8, True)
    a("s_nop 7")
    cvt4(a, O_, ACC, ACC+4)
    a(f"ds_write_b64 v3, v[{O_}:{O_+1}]")
    a(f"ds_write_b64 v3, v[{O_+2}:{O_+3}] offset:6144")
    qstamp(a, cfg, 1)
    a.label(lnp)
    a(f"s_cmp_lt_u32 s{S_WAVE}, 4")
    a(f"s_cbranch_scc1 {jn}")
    a(f"s_cmp_eq_u32 s{S_U}, 0")
    a(f"s_cbranch_scc1 {jn}")
    QF = 64
    KFR = 16
    S0, S1, SM = 48, 52, 56
    mx, tmp = 60, 61
    PB, PM = 88, 92
    ONE = 40
    VT = 176
    D = 212
    Z = 236
    OUT = 240
    AQ_, AK_, AV_ = 44, 45, 46
    a(f"s_xor_b32 s72, s72, 1")
    a(f"s_mul_i32 s64, s72, 12288")
    a(f"v_add_u32 v{AQ_}, s64, v12")
    a(f"s_lshl_b32 s64, s64, 1")
    a(f"v_add_u32 v{AK_}, s64, v6")
    a(f"v_add_u32 v{AV_}, s64, v13")
    for ks in range(6): a(f"ds_read_b128 v[{QF+4*ks}:{QF+4*ks+3}], v{AQ_} offset:{ks*1024}")
    def smma(acc, ks):
        c = "0" if ks == 0 else f"v[{acc}:{acc+3}]"
        a(f"v_mfma_f32_16x16x32_bf16 v[{acc}:{acc+3}], v[{KFR+4*ks}:{KFR+4*ks+3}], v[{QF+4*ks}:{QF+4*ks+3}], {c}")
    def stile(acc, off):
        for ks in range(6): a(f"ds_read_b128 v[{KFR+4*ks}:{KFR+4*ks+3}], v{AK_} offset:{off+ks*1024}")
        for ks in range(6):
            a(f"s_waitcnt lgkmcnt({5-ks})")
            smma(acc, ks)
    stile(S0, 0)
    lq0 = a.newlabel("q0"); lq1 = a.newlabel("q1")
    a(f"v_mov_b32 v{tmp}, 0xf149f2ca")
    a(f"s_cmp_eq_u32 s79, 0")
    a(f"s_cbranch_scc1 {lq0}")
    stile(S1, 6144)
    a("s_nop 7")
    for r in range(4): a(f"v_cndmask_b32 v{S1+r}, v{S1+r}, v{tmp}, s[{82+2*r}:{83+2*r}]")
    a(f"s_branch {lq1}")
    a.label(lq0)
    a("s_nop 7")
    for r in range(4): a(f"v_cndmask_b32 v{S0+r}, v{S0+r}, v{tmp}, s[{82+2*r}:{83+2*r}]")
    for r in range(4): a(f"v_mov_b32 v{S1+r}, v{tmp}")
    a.label(lq1)
    for t in range(6): a(f"ds_read_b128 v[{VT+4*t}:{VT+4*t+3}], v{AV_} offset:{t*1024}")
    for t in range(6): a(f"v_mov_b32 v{VMR+2*t+1}, 0")
    for k in range(4): a(f"v_mov_b32 v{ONE+k}, 0x3f803f80")
    a(f"v_mov_b32 v{PM+1}, 0")
    a(f"v_max3_f32 v{mx}, v{S0}, v{S0+1}, v{S0+2}")
    a(f"v_max3_f32 v{mx}, v{mx}, v{S0+3}, v{S1}")
    a(f"v_max3_f32 v{mx}, v{mx}, v{S1+1}, v{S1+2}")
    a(f"v_max_f32 v{mx}, v{mx}, v{S1+3}")
    qstamp(a, cfg, 2)
    lhv = a.newlabel("qhv")
    a(f"s_cmp_eq_u32 s69, 1")
    a(f"s_cbranch_scc1 {lhv}")
    if wait: flag_wait(a, 11, S_U, 78, 2, sleep=1, ahead="min3")
    km_loads()
    a.label(lhv)
    a(f"s_waitcnt vmcnt(6)")
    for ks in range(6):
        c = "0" if ks == 0 else f"v[{SM}:{SM+3}]"
        a(f"v_mfma_f32_16x16x32_bf16 v[{SM}:{SM+3}], v[{KMR+4*ks}:{KMR+4*ks+3}], v[{QF+4*ks}:{QF+4*ks+3}], {c}")
    a(f"s_lshl_b32 s74, s68, 1")
    qstamp(a, cfg, 3)
    a("s_nop 6")
    a(f"v_max3_f32 v{mx}, v{mx}, v{SM}, v{SM+1}")
    for op in ("v_permlane16_swap_b32", "v_permlane32_swap_b32"):
        a(f"v_mov_b32 v{tmp}, v{mx}")
        a("s_nop 1")
        a(f"{op} v{mx}, v{tmp}")
        a(f"v_max_f32 v{mx}, v{mx}, v{tmp}")
    vals = [SM, SM+1, S0, S0+1, S0+2, S0+3, S1, S1+1, S1+2, S1+3]
    a(f"v_mul_f32 v{mx}, s81, v{mx}")
    for v in vals: a(f"v_fma_f32 v{v}, v{v}, s81, -v{mx}")
    for v in vals: a(f"v_exp_f32 v{v}, v{v}")
    a(f"v_cvt_pk_bf16_f32 v{PM}, v{SM}, v{SM+1}")
    cvt4(a, PB, S0, S1)
    qstamp(a, cfg, 4)
    a("s_waitcnt vmcnt(0) lgkmcnt(0)")
    qstamp(a, cfg, 5)
    a(f"v_mfma_f32_16x16x16_bf16 v[{Z}:{Z+3}], v[{ONE}:{ONE+1}], v[{PM}:{PM+1}], 0")
    for t in range(6):
        a(f"v_mfma_f32_16x16x16_bf16 v[{D+4*t}:{D+4*t+3}], v[{VMR+2*t}:{VMR+2*t+1}], v[{PM}:{PM+1}], 0")
    a(f"v_mfma_f32_16x16x32_bf16 v[{Z}:{Z+3}], v[{ONE}:{ONE+3}], v[{PB}:{PB+3}], v[{Z}:{Z+3}]")
    for t in range(6):
        a(f"v_mfma_f32_16x16x32_bf16 v[{D+4*t}:{D+4*t+3}], v[{VT+4*t}:{VT+4*t+3}], v[{PB}:{PB+3}], v[{D+4*t}:{D+4*t+3}]")
    a("s_nop 1")
    a(f"v_rcp_f32 v{tmp}, v{Z}")
    a("s_nop 0")
    for k in range(24): a(f"v_mul_f32 v{D+k}, v{D+k}, v{tmp}")
    for k in range(3): cvt4(a, OUT+4*k, D+8*k, D+8*k+4)
    st_intra(a, [f"buffer_store_dwordx4 v[{OUT+4*k}:{OUT+4*k+3}], v15, {WSR}, s74 offen offset:{k*1024}" for k in range(3)])
    qstamp(a, cfg, 6)
    a.label(jn)
    a(f"s_add_u32 s{S_U}, s{S_U}, 1")
    a(f"s_branch {top}")
    a.label(fin)
    if cfg.get("qts"):
        import chain
        chain.ts_dump(a, cfg, 10)
    a("s_endpgm")

def gen_o_pre(a, cfg):
    a(f"s_sub_u32 s60, s{S_IDX}, 24")
    a(f"s_mul_i32 s62, s{S_GRP}, {768*1280}")
    a(f"s_mul_i32 s63, s60, 320")
    a(f"s_add_u32 s62, s62, s63")
    tr_base(a, 10, 320, 4, 8, 11)
    a(f"s_lshl_b32 s63, s{S_WAVE}, 1")
    a(f"s_add_u32 s64, s{S_WAVE}, 2")
    a(f"s_min_u32 s9, s63, s64")
    a(f"s_lshl_b32 s63, s9, 5")
    a(f"v_add_u32 v10, s63, v10")
    def two(l): a(f"s_cmp_lt_u32 s{S_WAVE}, 2"); a(f"s_cbranch_scc0 {l}")
    def one(l): a(f"s_cmp_lt_u32 s{S_WAVE}, 2"); a(f"s_cbranch_scc1 {l}")
    rd = make_reader(a, 10, 11, [(two, [(64, 0), (160, 32)]), (one, [(64, 0)])], 320, 128, 16)
    stage_weights(a, S_WO, 6144*640*2, 1280, 62, 768, 20, 128, 4, rd, vb=2)

LO_B = 98304
def gen_o_main(a, cfg):
    wait = not cfg.get("nowait")
    a(f"v_lshlrev_b32 v7, 4, v1")
    a(f"s_mul_i32 s63, s{S_GRP}, {128*40}")
    a(f"s_mul_i32 s64, s60, 10")
    a(f"s_add_u32 s63, s63, s64")
    a(f"s_add_u32 s63, s63, s9")
    a(f"s_lshl_b32 s63, s63, 10")
    a(f"s_add_u32 s63, s63, {PO}")
    a(f"v_add_u32 v9, s63, v7")
    a(f"s_lshl_b32 s63, s{S_GRP}, 7")
    a(f"s_add_u32 s63, s63, {FLQ}")
    a(f"v_min_u32 v11, 3, v1")
    a(f"v_lshlrev_b32 v11, 2, v11")
    a(f"v_add_u32 v11, s63, v11")
    a(f"v_mov_b32 v10, {LO_B}")
    a(f"s_mov_b32 s77, 0")
    a(f"s_mov_b32 s{S_U}, 0")
    a(f"s_mov_b32 s78, 0")
    def src_setup(sseg):
        a(f"s_lshl_b32 s70, s{sseg}, 4")
        a(f"s_add_u32 s70, s70, s{S_GRP}")
        a(f"s_mul_i32 s70, s70, {4*6144}")
        a(f"s_lshl_b32 s63, s{S_WAVE}, 10")
        a(f"s_add_u32 s70, s70, s63")
        a(f"s_add_u32 s70, s70, {OF}")
        a(f"s_add_u32 s80, s70, {32*6144}")
        a(f"s_and_b32 s71, s{sseg}, 1")
        a(f"s_mul_i32 s71, s71, 49152")
        a(f"s_add_u32 s71, s71, s63")
        a(f"s_add_u32 s81, s71, 24576")
    d0 = dma_stream(a, 70, 71); d1 = dma_stream(a, 80, 81)
    one = a.newlabel("o1")
    a(f"s_cmp_lt_u32 s{S_WAVE}, 2")
    a(f"s_cbranch_scc0 {one}")
    for nt in (2, 1):
        if nt == 1: a.label(one)
        top = a.newlabel("o"); have = a.newlabel("oh"); nopf = a.newlabel("on"); jn = a.newlabel("oj"); go = a.newlabel("og")
        a.label(top)
        a(f"s_cmp_gt_u32 s78, s{S_U}")
        a(f"s_cbranch_scc1 {have}")
        a("s_waitcnt vmcnt(0)")
        a("s_barrier")
        flag_set(a, S_FLAG, S_U, False, 2)
        a(f"s_add_u32 s75, s{S_U}, 1")
        if wait: flag_wait_w0(a, 11, 75, 77, 12, sleep=1, ahead=0)
        a("s_barrier")
        src_setup(S_U)
        for k in range(3): d0()
        for k in range(3): d1()
        a(f"s_add_u32 s78, s{S_U}, 1")
        a("s_waitcnt vmcnt(3)")
        a(f"s_branch {go}")
        a.label(have)
        a(f"s_waitcnt vmcnt({nt})")
        a.label(go)
        a("s_barrier")
        a(f"s_and_b32 s63, s{S_U}, 1")
        a(f"s_mul_i32 s63, s63, 49152")
        a(f"v_add_u32 v8, s63, v7")
        a(f"s_mul_i32 s74, s{S_U}, {80*1024}")
        if nt == 1:
            lp = a.newlabel("op")
            a(f"s_cmp_eq_u32 s{S_WAVE}, 7")
            a(f"s_cbranch_scc0 {lp}")
            a(f"buffer_load_dword v12, v11, {WSR}, 0 offen sc1")
            a.label(lp)
        gemm_unit(a, 24, [64, 160][:nt], [ACC, ACC+4][:nt], FR, NF, 8, 0, True)
        if nt == 1:
            lp = a.newlabel("op")
            a(f"s_cmp_eq_u32 s{S_WAVE}, 7")
            a(f"s_cbranch_scc0 {lp}")
            a("s_waitcnt vmcnt(0)")
            a(f"s_add_u32 s75, s{S_U}, 2")
            a(f"v_cmp_gt_u32 vcc, s75, v12")
            a(f"s_cmp_eq_u64 vcc, 0")
            a(f"s_cselect_b32 s63, 1, {0 if wait else 1}")
            a(f"v_mov_b32 v13, s63")
            a(f"ds_write_b32 v10, v13")
            a.label(lp)
        a("s_nop 7")
        for t in range(nt):
            a(f"buffer_store_dwordx4 v[{ACC+4*t}:{ACC+4*t+3}], v9, {WSR}, s74 offen offset:{1024*t} sc1")
        a(f"s_add_u32 s74, s74, {40*1024}")
        a(f"s_waitcnt vmcnt({nt}) lgkmcnt(0)")
        a("s_barrier")
        flag_set(a, S_FLAG, S_U, False, 2)
        a(f"ds_read_b32 v13, v10")
        a(f"s_add_u32 s75, s{S_U}, 1")
        a("s_waitcnt lgkmcnt(0)")
        a(f"v_readfirstlane_b32 s63, v13")
        a(f"s_cmp_lt_u32 s75, 64")
        a(f"s_cselect_b32 s63, s63, 0")
        a(f"s_cmp_eq_u32 s63, 0")
        a(f"s_cbranch_scc1 {nopf}")
        src_setup(75)
        a(f"s_add_u32 s78, s75, 1")
        gemm_unit(a, 24, [64, 160][:nt], [ACC+8, ACC+12][:nt], FR, NF, 8, 24576, True, {1: d0, 3: d0, 5: d0, 7: d1, 9: d1, 11: d1})
        a(f"s_branch {jn}")
        a.label(nopf)
        gemm_unit(a, 24, [64, 160][:nt], [ACC+8, ACC+12][:nt], FR, NF, 8, 24576, True)
        a.label(jn)
        a("s_nop 7")
        for t in range(nt):
            a(f"buffer_store_dwordx4 v[{ACC+8+4*t}:{ACC+8+4*t+3}], v9, {WSR}, s74 offen offset:{1024*t} sc1")
        a(f"s_add_u32 s{S_U}, s{S_U}, 1")
        a(f"s_cmp_lt_u32 s{S_U}, 64")
        a(f"s_cbranch_scc1 {top}")
        a("s_waitcnt vmcnt(0)")
        a("s_barrier")
        flag_set(a, S_FLAG, S_U, False, 2)
        a("s_endpgm")

def gen_e_main(a, cfg):
    srd(a, SRD_M, S_X, 2048*640*2)
    srd(a, SRD_W, S_OUT, 2048*640*2)
    MR_ = f"s[{SRD_M}:{SRD_M+3}]"
    a(f"s_lshl_b32 s63, s60, 3")
    a(f"s_add_u32 s63, s63, s{S_WAVE}")
    a(f"s_lshl_b32 s64, s63, 9")
    a(f"v_lshlrev_b32 v9, 3, v1")
    a(f"v_add_u32 v9, s64, v9")
    a(f"v_lshlrev_b32 v8, 1, v9")
    a(f"v_add_u32 v8, {PO}, v8")
    a(f"v_add_u32 v9, {GB}, v9")
    a(f"s_cmp_ge_u32 s63, 40")
    a(f"s_cselect_b32 s64, {16*1280 - 40*32}, 0")
    a(f"s_lshl_b32 s63, s63, 5")
    a(f"s_add_u32 s63, s63, s64")
    a(f"v_and_b32 v7, 15, v1")
    a(f"v_mul_u32_u24 v7, 1280, v7")
    a(f"v_lshrrev_b32 v10, 4, v1")
    a(f"v_lshlrev_b32 v10, 3, v10")
    a(f"v_add3_u32 v7, v7, v10, s63")
    a(f"v_min_u32 v11, {32 + 5*NF2 - 1}, v1")
    a(f"v_lshlrev_b32 v11, 7, v11")
    a(f"v_lshrrev_b32 v10, 5, v1")
    a(f"v_mul_u32_u24 v10, {(FL2 + (12*NF1-32)*128) - (FLX + 192*128)}, v10")
    a(f"v_add_u32 v11, v11, v10")
    a(f"v_add_u32 v11, {FLX + 192*128}, v11")
    a(f"s_mov_b32 s77, 0")
    a(f"s_mov_b32 s{S_U}, s9")
    top = a.newlabel("e")
    a.label(top)
    a(f"s_mul_i32 s74, s{S_U}, {32*1280}")
    a(f"buffer_load_dwordx2 v[48:49], v7, {MR_}, s74 offen")
    a(f"s_add_u32 s75, s{S_U}, 1")
    if not cfg.get("nowait"):
        flag_wait_w0(a, 11, 75, 77, 12, sleep=3, ahead=NE)
        a("s_barrier")
    a(f"buffer_load_dwordx2 v[50:51], v9, {WSR}, s74 offen sc1")
    a(f"s_lshl_b32 s70, s74, 1")
    for g in range(8):
        a(f"buffer_load_dwordx4 v[{16+4*g}:{19+4*g}], v8, {WSR}, s70 offen sc1")
        a(f"s_add_u32 s70, s70, {2048*2560}")
    a("s_waitcnt vmcnt(0)")
    for st in (4, 2, 1):
        for g in range(st):
            for r in range(4): a(f"v_add_f32 v{16+4*g+r}, v{16+4*g+r}, v{16+4*(g+st)+r}")
    for r in range(4):
        round_bf16(a, 16+r, 16+r)
        src = 50 + (r >> 1); xs = 48 + (r >> 1)
        if r & 1:
            a(f"v_and_b32 v{20+r}, 0xffff0000, v{src}"); a(f"v_and_b32 v{24+r}, 0xffff0000, v{xs}")
        else:
            a(f"v_lshlrev_b32 v{20+r}, 16, v{src}"); a(f"v_lshlrev_b32 v{24+r}, 16, v{xs}")
        a(f"v_mul_f32 v{16+r}, v{16+r}, v{20+r}")
        round_bf16(a, 16+r, 16+r)
        a(f"v_add_f32 v{16+r}, v{16+r}, v{24+r}")
    a(f"v_cvt_pk_bf16_f32 v52, v16, v17")
    a(f"v_cvt_pk_bf16_f32 v53, v18, v19")
    a(f"buffer_store_dwordx2 v[52:53], v7, {WR}, s74 offen")
    if TRACE:
        a(f"s_add_u32 s75, s{S_U}, 1")
        a(f"s_mov_b32 s2, 255")
        l = a.newlabel("et")
        a(f"s_cmp_eq_u32 s{S_WAVE}, 0")
        a(f"s_cbranch_scc0 {l}")
        a(f"v_mov_b32 v2, 0")
        trace(a, 75, 2)
        a.label(l)
    a(f"s_add_u32 s{S_U}, s{S_U}, {NE}")
    a(f"s_cmp_lt_u32 s{S_U}, 64")
    a(f"s_cbranch_scc1 {top}")
    a("s_endpgm")

def gen_relay_init(a, which):
    a(f"s_lshl_b32 s62, s{S_GRP}, 2")
    if which == "R":
        a(f"s_and_b32 s63, s{S_IDX}, 1")
        a(f"s_lshl_b32 s63, s63, 1")
        a(f"s_add_u32 s62, s62, s63")
        a(f"s_lshr_b32 s63, s{S_WAVE}, 2")
        a(f"s_add_u32 s62, s62, s63")
        a(f"s_and_b32 s61, s{S_WAVE}, 3")
        a(f"s_lshl_b32 s{S_FLAG}, s62, 7")
        a(f"s_lshl_b32 s63, s61, 2")
        a(f"s_add_u32 s{S_FLAG}, s{S_FLAG}, s63")
        a(f"s_add_u32 s{S_FLAG}, s{S_FLAG}, {KMF}")
    else:
        a(f"s_lshr_b32 s63, s{S_WAVE}, 1")
        a(f"s_add_u32 s62, s62, s63")
        a(f"s_and_b32 s61, s{S_WAVE}, 1")
        a(f"s_lshl_b32 s{S_FLAG}, s{S_GRP}, 7")
        a(f"s_lshl_b32 s63, s{S_WAVE}, 2")
        a(f"s_add_u32 s{S_FLAG}, s{S_FLAG}, s63")
        a(f"s_add_u32 s{S_FLAG}, s{S_FLAG}, {KVR}")
    a(f"v_mov_b32 v2, 0")
    a(f"buffer_store_dword v2, v2, {WSR}, s{S_FLAG} offen sc1")

def gen_relay_main(a, cfg):
    a(f"s_cmp_eq_u32 s61, 3")
    a(f"s_cbranch_scc1 L_exit")
    a(f"v_lshlrev_b32 v7, 4, v1")
    a(f"s_lshl_b32 s63, s{S_GRP}, 8")
    a(f"s_and_b32 s64, s62, 3")
    a(f"s_mul_i32 s64, s64, 3")
    a(f"s_add_u32 s64, s64, s61")
    a(f"s_lshl_b32 s64, s64, 2")
    a(f"s_add_u32 s63, s63, s64")
    a(f"s_add_u32 s63, s63, {FLI}")
    a(f"v_mov_b32 v11, s63")
    a(f"s_mul_i32 s63, s62, 6144")
    a(f"s_lshl_b32 s64, s61, 11")
    a(f"s_add_u32 s63, s63, s64")
    a(f"v_add_u32 v5, s63, v7")
    a(f"v_mov_b32 v4, {OOB}")
    a(f"v_and_b32 v2, 2, v1")
    a(f"v_cmp_eq_u32 vcc, 0, v2")
    a("s_nop 1")
    a(f"v_cndmask_b32 v5, v4, v5, vcc")
    a(f"s_lshr_b32 s63, s63, 1")
    a(f"v_add_u32 v6, s63, v7")
    a(f"v_mov_b32 v2, 0")
    a(f"s_mov_b32 s77, 0")
    a(f"s_mov_b32 s{S_U}, 0")
    top = a.newlabel("rl")
    a.label(top)
    a(f"s_add_u32 s75, s{S_U}, 1")
    a(f"s_mul_i32 s70, s{S_U}, {32*6144}")
    a(f"s_lshr_b32 s71, s70, 1")
    a(f"s_add_u32 s72, s70, {KM2}")
    a(f"s_add_u32 s74, s71, {VM2}")
    a(f"s_add_u32 s70, s70, {KM}")
    a(f"s_add_u32 s71, s71, {VM}")
    flag_wait(a, 11, 75, 77, 12, sleep=cfg.get("rsleep", 2), ahead=0, first=cfg.get("rfirst", 0))
    for ks in range(2):
        a(f"buffer_load_dwordx4 v[{16+4*ks}:{19+4*ks}], v5, {WSR}, s70 offen offset:{ks*1024} sc1")
    a(f"buffer_load_dwordx4 v[24:27], v6, {WSR}, s71 offen sc1")
    for ks in range(2):
        a(f"s_waitcnt vmcnt(2)")
        a(f"buffer_store_dwordx4 v[{16+4*ks}:{19+4*ks}], v5, {WSR}, s72 offen offset:{ks*1024} sc1")
    a(f"s_waitcnt vmcnt(2)")
    a(f"buffer_store_dwordx4 v[24:27], v6, {WSR}, s74 offen sc1")
    a(f"v_mov_b32 v3, s75")
    a("s_waitcnt vmcnt(0)")
    a(f"buffer_store_dword v3, v2, {WSR}, s{S_FLAG} offen sc1")
    if TRACE: trace(a, 75, 2)
    a(f"s_mov_b32 s{S_U}, s75")
    a(f"s_cmp_lt_u32 s{S_U}, 64")
    a(f"s_cbranch_scc1 {top}")
    a("s_endpgm")

def gen_pref_main(a, cfg):
    lead = cfg.get("plead", 6)
    a(f"s_and_b32 s60, s62, 3")
    a(f"s_lshl_b32 s63, s61, 2")
    a(f"s_add_u32 s63, s63, s60")
    a(f"s_lshl_b32 s63, s63, 3")
    a(f"s_add_u32 s63, s63, s{S_GRP}")
    a(f"s_lshl_b32 s63, s63, 7")
    a(f"s_add_u32 s63, s63, {FLX + 96*128}")
    a(f"v_mov_b32 v10, s63")
    a(f"s_lshl_b32 s63, s{S_GRP}, 8")
    a(f"s_mul_i32 s64, s60, 12")
    a(f"s_add_u32 s63, s63, s64")
    a(f"s_add_u32 s63, s63, {FLI}")
    a(f"v_mov_b32 v11, s63")
    a(f"v_lshlrev_b32 v7, 6, v1")
    a(f"s_mul_i32 s63, s62, 12288")
    a(f"s_mul_i32 s64, s61, {VF - KF}")
    a(f"s_add_u32 s63, s63, s64")
    a(f"s_add_u32 s63, s63, {KF}")
    a(f"v_add_u32 v7, s63, v7")
    a(f"v_mov_b32 v2, 0")
    a(f"s_mov_b32 s77, 0")
    a(f"s_mov_b32 s78, 0")
    a(f"s_mov_b32 s{S_U}, 0")
    top = a.newlabel("pl")
    a.label(top)
    a(f"s_max_u32 s75, s{S_U}, {lead}")
    a(f"s_sub_u32 s75, s75, {lead}")
    flag_wait(a, 11, 75, 78, 12, sleep=cfg.get('psleep', 8), ahead=0)
    a(f"s_add_u32 s75, s{S_U}, 1")
    flag_wait(a, 10, 75, 77, 12, sleep=1, ahead="exact")
    a(f"s_mul_i32 s70, s{S_U}, {32*12288}")
    for k in range(3):
        a(f"buffer_load_dword v{16+k}, v7, {WSR}, s70 offen sc1")
        a(f"s_add_u32 s70, s70, 4096")
    a(f"v_mov_b32 v3, s75")
    a("s_waitcnt vmcnt(0)")
    st_intra(a, [f"buffer_store_dword v3, v2, {WSR}, s{S_FLAG} offen"])
    if TRACE: trace(a, 75, 2)
    a(f"s_mov_b32 s{S_U}, s75")
    a(f"s_cmp_lt_u32 s{S_U}, 64")
    a(f"s_cbranch_scc1 {top}")
    a("s_endpgm")
```

```python
from common import *
import math

C_EXP = (192 ** -0.5) * math.log2(math.e)
import struct
def f32hex(x): return hex(struct.unpack("<I", struct.pack("<f", x))[0])

POLL_MAX = 30000
WSR = f"s[{SRD_WS}:{SRD_WS+3}]"

L_MEM = 0
L_QK = 10240
L_K = L_QK + 8*144
L_VT = 12800
L_RED = L_VT + 16384

LAYB = True
STATIC_MODE = None
def st_intra(a, instr):
    if STATIC_MODE is not None:
        for i in instr: a(i + (" sc1" if STATIC_MODE else ""))
        return
    st_intra_dyn(a, instr)

def st_intra_dyn(a, instr):
    l1 = a.newlabel("sf"); l2 = a.newlabel("sd")
    a(f"s_cmp_lg_u32 s{S_MODE}, 0")
    a(f"s_cbranch_scc1 {l1}")
    for i in instr: a(i)
    a(f"s_branch {l2}")
    a.label(l1)
    for i in instr: a(i + " sc1")
    a.label(l2)

def maxtree(a, regs, t):
    regs = list(regs)
    a(f"v_max3_u32 v{t}, v{regs[0]}, v{regs[1]}, v{regs[2]}")
    i = 3
    while i < len(regs):
        if i + 1 < len(regs):
            a(f"v_max3_u32 v{t}, v{t}, v{regs[i]}, v{regs[i+1]}"); i += 2
        else:
            a(f"v_max_u32 v{t}, v{t}, v{regs[i]}"); i += 1

POLL_DEPTH = 2
def poll_prep(a, regs):
    for r in regs: a(f"v_mov_b32 v{r}, -1")

def poll(a, loads, regs, t, scnt, depth=None):
    depth = depth or POLL_DEPTH
    l = a.newlabel("poll"); d = a.newlabel("pd")
    K = len(loads)
    a(f"s_mov_b32 s{scnt}, {POLL_MAX}")
    a.label(l)
    for x in loads: a(x)
    a(f"s_sub_u32 s{scnt}, s{scnt}, 1")
    a(f"s_cbranch_scc1 {d}")
    a(f"s_waitcnt vmcnt({K*(depth-1)})")
    maxtree(a, regs, t)
    a(f"v_cmp_eq_u32 vcc, -1, v{t}")
    a(f"s_cbranch_vccnz {l}")
    a.label(d)

def poll_tag(a, loads, regs, t, scnt, stag, depth):
    K = len(loads)
    d = a.newlabel("ptd"); l1 = a.newlabel("pt1")
    a(f"s_mov_b32 s{scnt}, {POLL_MAX}")
    a(f"s_cmp_eq_u32 s{stag}, 1")
    a(f"s_cbranch_scc1 {l1}")
    for tag in (0, 1):
        l = a.newlabel("pt")
        if tag: a.label(l1)
        a.label(l)
        for x in loads: a(x)
        a(f"s_sub_u32 s{scnt}, s{scnt}, 1")
        a(f"s_cbranch_scc1 {d}")
        a(f"s_waitcnt vmcnt({K*(depth-1)})")
        op = (lambda dd, x, y, z: f"v_bitop3_b32 v{dd}, v{x}, v{y}, v{z} bitop3:0x80") if tag else (lambda dd, x, y, z: f"v_or3_b32 v{dd}, v{x}, v{y}, v{z}")
        a(op(t, regs[0], regs[1], regs[2]))
        i = 3
        while i < len(regs):
            a(op(t, t, regs[i], regs[min(i+1, len(regs)-1)])); i += 2
        a(f"v_and_b32 v{t}, 1, v{t}")
        a(f"v_cmp_ne_u32 vcc, {tag}, v{t}")
        a(f"s_cbranch_vccnz {l}")
        if not tag: a(f"s_branch {d}")
    a.label(d)

def calibrate(a):
    a(f"s_lshl_b32 s63, s2, 3")
    a(f"s_add_u32 s63, s63, s{S_WAVE}")
    a(f"s_lshr_b32 s64, s63, 6")
    a(f"s_lshl_b32 s64, s64, 14")
    a(f"s_and_b32 s63, s63, 63")
    a(f"s_lshl_b32 s63, s63, 7")
    a(f"s_add_u32 s63, s63, s64")
    a(f"s_add_u32 s63, s63, {CAL}")
    a(f"s_add_u32 s64, s63, 8192")
    a(f"v_mov_b32 v2, 0")
    a(f"buffer_store_dword v2, v2, {WSR}, s63 offen sc1")
    a(f"buffer_store_dword v2, v2, {WSR}, s64 offen sc1")
    a("s_waitcnt vmcnt(0)")
    a("s_barrier")
    l = a.newlabel("cal")
    a(f"s_cmp_eq_u32 s{S_WAVE}, 0")
    a(f"s_cbranch_scc0 {l}")
    a("s_memtime s[88:89]")
    a("s_waitcnt lgkmcnt(0)")
    a(f"buffer_load_dword v3, v2, {WSR}, s63 offen sc1")
    a("s_waitcnt vmcnt(0)")
    a("s_memtime s[90:91]")
    a("s_waitcnt lgkmcnt(0)")
    a(f"buffer_load_dword v3, v2, {WSR}, s64 offen sc1")
    a("s_waitcnt vmcnt(0)")
    a("s_memtime s[92:93]")
    a("s_waitcnt lgkmcnt(0)")
    a("s_sub_u32 s92, s92, s90")
    a("s_sub_u32 s90, s90, s88")
    a("s_cmp_gt_u32 s90, s92")
    a("s_cselect_b32 s63, 1, 0")
    a("v_mov_b32 v3, s63")
    a("ds_write_b32 v2, v3")
    a("s_waitcnt lgkmcnt(0)")
    a.label(l)
    a("s_barrier")
    a("ds_read_b32 v3, v2")
    a("s_waitcnt lgkmcnt(0)")
    a(f"v_readfirstlane_b32 s63, v3")
    a(f"s_lshl_b32 s{S_NEAR}, s63, 13")
    a("s_barrier")

def stamp(a, cfg, k, sbase=90, nxt=None):
    if cfg.get("ts") and (cfg.get("sites") is None or k in cfg["sites"]):
        for (stepno, kk) in ((cfg["ts"], k),) + (((cfg["ts"]+1, nxt),) if nxt is not None else ()):
            l = a.newlabel("st")
            a(f"s_cmp_eq_u32 s73, {stepno}")
            a(f"s_cbranch_scc0 {l}")
            a(f"s_memrealtime s[88:89]")
            a("s_waitcnt lgkmcnt(0)")
            a(f"s_mov_b32 s{sbase+kk}, s88")
            a.label(l)

def gen_weight_load(a, hook=None):
    vl, vo_qkv, vo_o, vt0, vt1, vra, vrb = 1, 2, 3, 4, 5, 6, 7
    a.c("---- weight load: per-lane DMA source offsets")
    a(f"v_and_b32 v{vt0}, 7, v{vl}")
    a(f"v_lshrrev_b32 v{vt1}, 5, v{vl}")
    a(f"s_and_b32 s63, s{S_WAVE}, 1")
    a(f"s_lshl_b32 s63, s63, 1")
    a(f"v_add_u32 v{vt1}, s63, v{vt1}")
    a(f"v_lshlrev_b32 v{vt1}, 1, v{vt1}")
    a(f"v_xor_b32 v{vt0}, v{vt0}, v{vt1}")
    a(f"v_lshlrev_b32 v{vt0}, 4, v{vt0}")
    a(f"v_lshrrev_b32 v{vt1}, 3, v{vl}")
    a(f"s_lshl_b32 s63, s{S_WAVE}, 3")
    a(f"v_add_u32 v{vt1}, s63, v{vt1}")
    a(f"v_mul_u32_u24 v{vo_qkv}, 12288, v{vt1}")
    a(f"v_add_u32 v{vo_qkv}, v{vo_qkv}, v{vt0}")
    a(f"v_mul_u32_u24 v{vo_o}, 1280, v{vt1}")
    a(f"v_add_u32 v{vo_o}, v{vo_o}, v{vt0}")
    a(f"s_mul_i32 s64, s62, 384")
    a(f"s_lshl_b32 s63, s61, 7")
    a(f"s_add_u32 s64, s64, s63")
    a(f"s_mul_i32 s65, s{S_GRP}, {768*1280}")
    a(f"s_lshl_b32 s63, s{S_IDX}, 7")
    a(f"s_add_u32 s65, s65, s63")
    a(f"v_lshrrev_b32 v{vt0}, 5, v{vl}")
    a(f"v_lshlrev_b32 v{vra}, 11, v{vt0}")
    a(f"v_bfe_u32 v{vt0}, v{vl}, 4, 1")
    a(f"v_mul_u32_u24 v{vt0}, {4*128+32}, v{vt0}")
    a(f"v_add_u32 v{vra}, v{vra}, v{vt0}")
    a(f"v_bfe_u32 v{vt0}, v{vl}, 2, 1")
    a(f"v_lshlrev_b32 v{vt0}, 7, v{vt0}")
    a(f"v_add_u32 v{vra}, v{vra}, v{vt0}")
    a(f"v_bfe_u32 v{vt0}, v{vl}, 3, 1")
    a(f"v_mul_u32_u24 v{vt0}, {8*128+64}, v{vt0}")
    a(f"v_add_u32 v{vra}, v{vra}, v{vt0}")
    a(f"v_and_b32 v{vt0}, 3, v{vl}")
    a(f"v_lshlrev_b32 v{vt0}, 3, v{vt0}")
    a(f"v_add_u32 v{vra}, v{vra}, v{vt0}")
    a(f"s_and_b32 s66, s{S_WAVE}, 3")
    def issue(sptr, nbytes, voff, sbase, rs, first, cnt, half, slot0=0):
        srd(a, SRD_W, sptr, nbytes)
        a(f"s_lshl_b32 s63, s{S_WAVE}, 10")
        a(f"s_add_u32 s63, s63, {half*81920 + slot0*8192}")
        a(f"s_add_u32 s67, s{sbase}, {first*64*rs}")
        for q in range(cnt):
            a(f"s_mov_b32 m0, s63")
            a(f"s_add_u32 s63, s63, 8192")
            a(f"buffer_load_dwordx4 v{voff}, s[{SRD_W}:{SRD_W+3}], s67 offen lds")
            a(f"s_add_u32 s67, s67, {64*rs}")
    def read_qkv(dst, half):
        a(f"s_lshl_b32 s63, s66, 5")
        a(f"v_xor_b32 v{vt0}, s63, v{vra}")
        a(f"v_add_u32 v{vt0}, {half*81920}, v{vt0}")
        a(f"v_add_u32 v{vt1}, 0x8000, v{vt0}")
        a(f"v_add_u32 v{vt1}, 0x8000, v{vt1}")
        n = 0
        for t in range(10):
            for rho in range(4):
                off = t*8192 + (rho >> 1)*4096 + (rho & 1)*256
                base = vt0
                if off >= 65536: off -= 65536; base = vt1
                a(f"ds_read_b64_tr_b16 v[{dst+t*8+rho*2}:{dst+t*8+rho*2+1}], v{base} offset:{off}")
                n += 1
                if n % 12 == 0: a("s_waitcnt lgkmcnt(4)")
        a("s_waitcnt lgkmcnt(0)")
    def read_wo(tps, vbase):
        n = 0
        for k, tp in enumerate(tps):
            for u in range(4):
                a(f"v_xor_b32 v{vt1}, {u*32}, v{vbase}")
                for rho in range(4):
                    off = k*8192 + (rho >> 1)*4096 + (rho & 1)*256
                    d = WO + (tp*4+u)*8 + rho*2
                    a(f"ds_read_b64_tr_b16 v[{d}:{d+1}], v{vt1} offset:{off}")
                a("s_waitcnt lgkmcnt(4)")
        a("s_waitcnt lgkmcnt(0)")
    WQKV = 640*6144*2
    issue(S_WQ, WQKV, vo_qkv, 64, 12288, 0, 4, 0)
    if hook:
        a("s_waitcnt vmcnt(4)"); a("s_barrier")
        hook()
    issue(S_WQ, WQKV, vo_qkv, 64, 12288, 4, 6, 0, 4)
    issue(S_WK, WQKV, vo_qkv, 64, 12288, 0, 10, 1)
    def only(qk, body):
        l = a.newlabel("wl")
        a(f"s_cmp_lt_u32 s{S_WAVE}, 4")
        a(f"s_cbranch_scc{0 if qk else 1} {l}")
        body()
        a.label(l)
    a("s_waitcnt vmcnt(10)"); a("s_barrier")
    only(True, lambda: read_qkv(WQ, 0))
    a("s_barrier")
    issue(S_WV, WQKV, vo_qkv, 64, 12288, 0, 10, 0)
    a("s_waitcnt vmcnt(10)"); a("s_barrier")
    only(True, lambda: read_qkv(WK, 1))
    a("s_barrier")
    issue(S_WO, WQKV, vo_o, 65, 1280, 0, 10, 1)
    a("s_waitcnt vmcnt(10)"); a("s_barrier")
    only(False, lambda: read_qkv(WV, 0))
    a("s_barrier")
    issue(S_WO, WQKV, vo_o, 65, 1280, 10, 2, 0)
    a("s_waitcnt vmcnt(0)"); a("s_barrier")
    def wo_body():
        a(f"s_mul_i32 s63, s66, {3*8192}")
        a(f"s_add_u32 s63, s63, 81920")
        a(f"v_add_u32 v{vrb}, s63, v{vra}")
        read_wo([0], vrb)
        a(f"s_add_u32 s63, s63, 8192")
        a(f"s_cmp_eq_u32 s66, 3")
        a(f"s_cselect_b32 s63, 0, s63")
        a(f"v_add_u32 v{vrb}, s63, v{vra}")
        read_wo([1, 2], vrb)
    only(False, wo_body)
    a("s_barrier")

WQ, WK = 96, 176
WV, WO = 176, 80

def gen_chain_init(a, cfg):
    a.c("==== chain init")
    a(f"s_mul_i32 s60, s{S_IDX}, 86")
    a(f"s_lshr_b32 s60, s60, 8")
    a(f"s_mul_i32 s61, s60, 3")
    a(f"s_sub_u32 s61, s{S_IDX}, s61")
    a(f"s_lshl_b32 s62, s{S_GRP}, 2")
    a(f"s_add_u32 s62, s62, s60")

def qk_addr_setup(a):
    a(f"v_lshlrev_b32 v7, 4, v1")
    a(f"s_lshl_b32 s63, s{S_WAVE}, 10")
    a(f"v_add_u32 v5, s63, v7")
    a(f"s_and_b32 s63, s{S_WAVE}, 1")
    a(f"s_add_u32 s63, s63, 8")
    a(f"s_lshl_b32 s63, s63, 10")
    a(f"v_add_u32 v6, s63, v7")
    if LAYB:
        a(f"s_lshr_b32 s63, s{S_GRP}, 1")
        a(f"s_lshl_b32 s63, s63, 17")
    else:
        a(f"s_lshl_b32 s63, s{S_GRP}, 16")
    a(f"s_add_u32 s63, s63, {MR}")
    a(f"v_add_u32 v2, s63, v5")
    a(f"v_add_u32 v3, 0x1000, v2")
    a(f"v_add_u32 v4, s63, v6")
    a(f"v_lshrrev_b32 v12, 4, v1")
    a(f"v_mul_u32_u24 v8, 288, v12")
    a(f"v_and_b32 v13, 15, v1")
    a(f"v_lshlrev_b32 v14, 1, v13")
    a(f"v_add_u32 v8, v8, v14")
    a(f"s_lshl_b32 s63, s{S_WAVE}, 5")
    a(f"s_add_u32 s63, s63, {L_QK}")
    a(f"v_add_u32 v8, s63, v8")
    a(f"v_and_b32 v14, 7, v1")
    a(f"v_mul_u32_u24 v9, 144, v14")
    a(f"v_lshlrev_b32 v15, 4, v12")
    a(f"v_add_u32 v9, v9, v15")
    a(f"v_add_u32 v9, {L_QK}, v9")
    a(f"v_bfe_u32 v10, v1, 2, 2")
    a(f"v_lshlrev_b32 v10, 1, v10")
    a(f"v_and_b32 v16, 1, v1")
    a(f"v_add_u32 v10, v10, v16")
    a(f"v_mul_u32_u24 v10, 144, v10")
    a(f"v_add_u32 v10, v10, v15")
    a(f"v_add_u32 v10, {L_K}, v10")
    a(f"v_mov_b32 v52, 0x4444")
    a(f"v_mov_b32 v17, 0xeeee")
    a(f"v_cmp_eq_u32 vcc, 1, v16")
    a("s_nop 1")
    a(f"v_cndmask_b32 v52, v52, v17, vcc")
    a(f"s_lshl_b32 s63, s{S_GRP}, 16")
    a(f"s_lshl_b32 s67, s60, 12")
    a(f"s_add_u32 s63, s63, s67")
    a(f"s_add_u32 s63, s63, {SR}")
    l1 = a.newlabel("qs"); l2 = a.newlabel("qs")
    a(f"s_cmp_eq_u32 s{S_WAVE}, 0")
    a(f"s_cbranch_scc0 {l1}")
    a(f"s_lshl_b32 s67, s61, 8")
    a(f"s_add_u32 s63, s63, s67")
    a(f"s_add_u32 s63, s63, 3072")
    a(f"v_lshlrev_b32 v11, 2, v1")
    a(f"v_add_u32 v11, s63, v11")
    a(f"s_branch {l2}")
    a.label(l1)
    a(f"s_lshl_b32 s67, s61, 10")
    a(f"s_add_u32 s63, s63, s67")
    a(f"s_sub_u32 s67, s{S_WAVE}, 1")
    a(f"s_lshl_b32 s67, s67, 9")
    a(f"s_add_u32 s63, s63, s67")
    a(f"v_lshlrev_b32 v11, 3, v12")
    a(f"v_add_u32 v11, v11, v14")
    a(f"v_lshlrev_b32 v11, 4, v11")
    a(f"v_add_u32 v11, s63, v11")
    a(f"v_mov_b32 v17, {OOB}")
    a(f"v_cmp_gt_u32 vcc, 8, v13")
    a("s_nop 1")
    a(f"v_cndmask_b32 v11, v17, v11, vcc")
    a.label(l2)
    a(f"v_cmp_le_u32 s[68:69], 8, v13")
    a(f"s_mul_i32 s63, s62, 6")
    a(f"s_lshl_b32 s67, s61, 1")
    a(f"s_add_u32 s63, s63, s67")
    a(f"s_lshl_b32 s63, s63, 10")
    a(f"s_add_u32 s63, s63, {KM}")
    a(f"v_add_u32 v0, s63, v7")


def qk_reset(a, sslot, neg):
    l1 = a.newlabel("qr"); l2 = a.newlabel("qr")
    a(f"s_cmp_eq_u32 s{S_WAVE}, 3")
    a(f"s_cbranch_scc1 {l2}")
    a(f"s_cmp_eq_u32 s{S_WAVE}, 0")
    a(f"s_cbranch_scc0 {l1}")
    st_intra(a, [f"buffer_store_dword v{neg}, v11, {WSR}, s{sslot} offen"])
    a(f"s_branch {l2}")
    a.label(l1)
    st_intra(a, [f"buffer_store_dwordx4 v[{neg}:{neg+3}], v11, {WSR}, s{sslot} offen"])
    a.label(l2)

def vo_addr_setup(a):
    a(f"s_and_b32 s66, s{S_WAVE}, 3")
    a(f"v_lshlrev_b32 v7, 4, v1")
    a(f"v_lshrrev_b32 v20, 4, v1")
    a(f"v_and_b32 v21, 15, v1")
    a(f"v_and_b32 v22, 7, v1")
    a(f"v_bfe_u32 v23, v1, 3, 1")
    a(f"s_lshl_b32 s63, s{S_GRP}, 16")
    a(f"s_lshl_b32 s67, s60, 12")
    a(f"s_add_u32 s67, s63, s67")
    a(f"s_add_u32 s67, s67, {SR}")
    a(f"v_lshlrev_b32 v2, 3, v20")
    a(f"v_add_u32 v2, v2, v22")
    a(f"v_lshlrev_b32 v2, 4, v2")
    a(f"v_lshlrev_b32 v24, 9, v23")
    a(f"v_add_u32 v2, v2, v24")
    a(f"v_add_u32 v2, s67, v2")
    a(f"s_add_u32 s67, s67, 3072")
    a(f"v_lshlrev_b32 v3, 2, v1")
    a(f"v_add_u32 v3, s67, v3")
    a(f"v_lshlrev_b32 v24, 5, v22")
    a(f"v_lshlrev_b32 v25, 3, v20")
    a(f"v_add_u32 v24, v24, v25")
    a(f"s_lshl_b32 s67, s{S_IDX}, 10")
    a(f"s_lshl_b32 s70, s66, 8")
    a(f"s_add_u32 s67, s67, s70")
    a(f"s_add_u32 s67, s67, s63")
    a(f"s_add_u32 s70, s67, {OR_}")
    a(f"v_add_u32 v4, s70, v24")
    a(f"v_mov_b32 v26, {OOB}")
    a(f"v_cmp_gt_u32 vcc, 8, v21")
    a("s_nop 1")
    a(f"v_cndmask_b32 v4, v26, v4, vcc")
    a(f"s_mul_i32 s70, s66, 3072")
    a(f"s_add_u32 s70, s70, s63")
    a(f"s_add_u32 s70, s70, {OR_}")
    a(f"v_add_u32 v5, s70, v7")
    a(f"v_lshlrev_b32 v6, 7, v20")
    a(f"v_lshlrev_b32 v24, 2, v21")
    a(f"v_add_u32 v6, v6, v24")
    a(f"s_lshl_b32 s70, s66, 9")
    a(f"s_add_u32 s70, s70, {L_RED}")
    a(f"v_add_u32 v6, s70, v6")
    a(f"s_lshl_b32 s70, s66, 11")
    a(f"s_add_u32 s70, s70, {L_RED}")
    a(f"v_add_u32 v8, s70, v7")
    a(f"s_lshl_b32 s70, s{S_IDX}, 1")
    a(f"s_lshr_b32 s71, s66, 1")
    a(f"s_add_u32 s70, s70, s71")
    a(f"s_lshl_b32 s70, s70, 14")
    a(f"s_and_b32 s71, s66, 1")
    a(f"s_lshl_b32 s71, s71, 12")
    a(f"s_add_u32 s70, s70, s71")
    a(f"s_add_u32 s70, s70, {XR}")
    if LAYB:
        a(f"s_lshl_b32 s71, s{S_IDX}, 1")
        a(f"s_and_b32 s64, s{S_GRP}, 1")
        a(f"s_add_u32 s71, s71, s64")
        a(f"s_lshl_b32 s71, s71, 14")
        a(f"s_and_b32 s64, s66, 1")
        a(f"s_lshl_b32 s64, s64, 12")
        a(f"s_add_u32 s71, s71, s64")
        a(f"s_add_u32 s71, s71, {XR}")
    else:
        a(f"s_add_u32 s71, s70, s{S_NEAR}")
    a(f"v_add_u32 v10, s71, v7")
    a(f"s_lshl_b32 s71, s{S_GRP}, 9")
    a(f"s_add_u32 s70, s70, s71")
    a(f"v_and_b32 v24, 31, v1")
    a(f"v_lshlrev_b32 v24, 4, v24")
    a(f"v_lshrrev_b32 v25, 5, v1")
    a(f"v_lshlrev_b32 v25, 3, v25")
    a(f"v_add3_u32 v9, v24, v25, s70")
    a(f"v_add_u32 v24, v24, v25")
    a(f"v_lshrrev_b32 v24, 1, v24")
    if LAYB:
        a(f"s_lshr_b32 s70, s{S_GRP}, 1")
        a(f"s_lshl_b32 s70, s70, 17")
        a(f"s_lshl_b32 s71, s{S_IDX}, 10")
        a(f"s_add_u32 s70, s70, s71")
        a(f"s_and_b32 s71, s{S_GRP}, 1")
        a(f"s_lshl_b32 s71, s71, 9")
        a(f"s_add_u32 s70, s70, s71")
        a(f"s_and_b32 s71, s66, 1")
        a(f"s_lshl_b32 s71, s71, 8")
        a(f"s_add_u32 s70, s70, s71")
        a(f"s_add_u32 s70, s70, {MR}")
        a(f"s_cmp_lt_u32 s66, 2")
        a(f"s_cselect_b32 s70, s70, {OOB}")
    else:
        a(f"s_add_u32 s70, s67, {MR}")
    a(f"v_add_u32 v11, s70, v24")
    a(f"v_and_b32 v24, 1, v1")
    a(f"v_mov_b32 v12, 0x4444")
    a(f"v_mov_b32 v25, 0xeeee")
    a(f"v_cmp_eq_u32 vcc, 1, v24")
    a("s_nop 1")
    a(f"v_cndmask_b32 v12, v12, v25, vcc")
    a(f"s_mul_i32 s70, s62, 12")
    a(f"s_lshl_b32 s71, s61, 2")
    a(f"s_add_u32 s70, s70, s71")
    a(f"s_add_u32 s70, s70, s66")
    a(f"s_lshl_b32 s70, s70, 8")
    a(f"s_add_u32 s70, s70, {VM}")
    a(f"v_lshlrev_b32 v24, 2, v1")
    a(f"v_add_u32 v13, s70, v24")

def gen_chain_pre(a, cfg):
    lvo = a.newlabel("cvo"); ld = a.newlabel("cd")
    a(f"s_mov_b32 s{S_MODE}, 1")
    a(f"s_cmp_lt_u32 s{S_WAVE}, 4")
    a(f"s_cbranch_scc0 {lvo}")
    qk_addr_setup(a)
    for k in range(4): a(f"v_mov_b32 v{40+k}, -1")
    for slot in range(4):
        a(f"s_mov_b32 s72, {slot*16384}")
        qk_reset(a, 72, 40)
    a(f"s_branch {ld}")
    a.label(lvo)
    vo_addr_setup(a)
    for k in range(4): a(f"v_mov_b32 v{40+k}, -1")
    lnb = a.newlabel("cnb")
    for slot in range(4):
        a(f"s_mov_b32 s72, {slot*16384}")
        a(f"buffer_store_dwordx2 v[40:41], v4, {WSR}, s72 offen sc1")
    a(f"s_cmp_lt_u32 s{S_IDX}, 10")
    a(f"s_cbranch_scc0 {lnb}")
    for slot in range(4):
        if slot < 2:
            for cp in range(2):
                a(f"s_mov_b32 s72, {slot*XR_SLOT + cp*8192}")
                a(f"buffer_store_dwordx2 v[40:41], v9, {WSR}, s72 offen sc1")
        if slot:
            a(f"s_mov_b32 s72, {slot*16384}")
            a(f"buffer_store_dword v40, v11, {WSR}, s72 offen sc1")
    a.label(lnb)
    a.label(ld)

def ts_dump(a, cfg, n):
    a(f"s_lshl_b32 s88, s2, 3")
    a(f"s_add_u32 s88, s88, s{S_WAVE}")
    a(f"s_lshl_b32 s88, s88, 6")
    a(f"s_add_u32 s88, s88, {TSDBG}")
    a(f"v_mov_b32 v55, 0")
    for k in range(n):
        a(f"v_mov_b32 v54, s{90+k}")
        a(f"buffer_store_dword v54, v55, {WSR}, s88 offen offset:{4*k}")
        a("s_nop 0")

def smf(a, acc, A_, W, idx):
    a(f"v_smfmac_f32_16x16x64_bf16 v[{acc}:{acc+3}], v[{A_}:{A_+3}], v[{W}:{W+7}], v{idx}")

def gen_qk_setup(a, cfg):
    qk_addr_setup(a)
    a(f"s_lshl_b32 s63, s{S_WAVE}, 11")
    a(f"s_add_u32 s63, s63, {L_VT + 4096 - 2048}")
    a(f"v_add_u32 v53, s63, v7")
    a("s_mov_b32 s73, 0")
    for k in range(8): a(f"v_mov_b32 v{32+k}, 0")
    poll_prep(a, range(40, 52))
    a("s_barrier")

def gen_qk_loop(a, cfg, W):
    P = 40
    F = 56
    AQ, AK = 32, 36
    A_, B_, S_ = 24, 16, 12
    own = [W, W+4] + ([W+8] if W < 2 else [])
    rest = [t for t in range(10) if t not in own]
    n = len(own)
    a.c(f"==== QK wave {W} main loop")
    top = a.newlabel("qkloop"); done = a.newlabel("qkdone")
    a.label(top)
    a(f"s_and_b32 s72, s73, 3")
    a(f"s_lshl_b32 s72, s72, 14")
    if W in (1, 2):
        a(f"s_and_b32 s75, s73, 1")
        a(f"s_lshl_b32 s75, s75, 13")
        a(f"v_add_u32 v54, s75, v53")
        a(f"ds_read_b128 v[{A_}:{A_+3}], v54")
        a(f"ds_read_b128 v[{A_+4}:{A_+7}], v54 offset:1024")
    if cfg.get("mdelay"): a(f"s_sleep {cfg['mdelay']}")
    poll(a, [f"buffer_load_dwordx4 v[{P+4*k}:{P+4*k+3}], v{2+k}, {WSR}, s72 offen sc1" for k in range(n)],
         range(P, P+4*n), 54, 76)
    stamp(a, cfg, 0, nxt=9)
    for k, t in enumerate(own):
        a(f"ds_write_b128 v7, v[{P+4*k}:{P+4*k+3}] offset:{t*1024}")
    a("s_waitcnt lgkmcnt(0)")
    a("s_barrier")
    stamp(a, cfg, 3)
    for k, t in enumerate(rest):
        a(f"ds_read_b128 v[{F+4*k}:{F+4*k+3}], v7 offset:{t*1024}")
    for k, t in enumerate(own):
        smf(a, AQ, P+4*k, WQ+8*t, 52)
        smf(a, AK, P+4*k, WK+8*t, 52)
    m = len(rest)
    for k, t in enumerate(rest):
        a(f"s_waitcnt lgkmcnt({m-1-k})")
        smf(a, AQ, F+4*k, WQ+8*t, 52)
    qe = [None, None, None, None,
          f"v_add_f32 v{AQ}, v{AQ}, v{AQ+1}\nv_add_f32 v{AQ+2}, v{AQ+2}, v{AQ+3}",
          f"v_cvt_pk_bf16_f32 v54, v{AQ}, v{AQ+2}",
          f"ds_write_b16 v8, v54\nds_write_b16_d16_hi v8, v54 offset:144"]
    for k, t in enumerate(rest):
        smf(a, AK, F+4*k, WK+8*t, 52)
        if k < 4: a("s_nop 0")
        elif k < len(qe) and qe[k]: a(qe[k])
    a("s_nop 7" if m > 7 else "s_nop 5")
    a(f"v_add_f32 v{AK}, v{AK}, v{AK+1}")
    a(f"v_add_f32 v{AK+2}, v{AK+2}, v{AK+3}")
    a(f"v_cvt_pk_bf16_f32 v55, v{AK}, v{AK+2}")
    stamp(a, cfg, 4)
    a(f"ds_write_b16 v8, v55 offset:{8*144}")
    a(f"ds_write_b16_d16_hi v8, v55 offset:{9*144}")
    a("s_waitcnt lgkmcnt(0)")
    a("s_barrier")
    stamp(a, cfg, 1)
    if W < 3:
        a(f"ds_read_b128 v[{B_}:{B_+3}], v9")
        if W == 0: a(f"ds_read_b128 v[{A_}:{A_+3}], v10")
        a(f"ds_read_b128 v[{B_+4}:{B_+7}], v9 offset:64")
        if W == 0: a(f"ds_read_b128 v[{A_+4}:{A_+7}], v10 offset:64")
        a(f"s_waitcnt lgkmcnt({2 if W == 0 else 1})")
        a(f"v_mfma_f32_16x16x32_bf16 v[{S_}:{S_+3}], v[{A_}:{A_+3}], v[{B_}:{B_+3}], 0")
        a("s_waitcnt lgkmcnt(0)")
        a(f"v_mfma_f32_16x16x32_bf16 v[{S_}:{S_+3}], v[{A_+4}:{A_+7}], v[{B_+4}:{B_+7}], v[{S_}:{S_+3}]")
        a("s_nop 7")
        if W == 0:
            a(f"v_cndmask_b32 v54, v{S_}, v{S_+1}, s[68:69]")
            st_intra(a, [f"buffer_store_dword v54, v11, {WSR}, s72 offen"])
        else:
            st_intra(a, [f"buffer_store_dwordx4 v[{S_}:{S_+3}], v11, {WSR}, s72 offen"])
    stamp(a, cfg, 2)
    def km_store():
        if W == 0:
            a(f"s_mul_i32 s74, s73, {32*6*1024}")
            st_intra(a, [f"buffer_store_dwordx4 v[{A_}:{A_+3}], v0, {WSR}, s74 offen",
                         f"buffer_store_dwordx4 v[{A_+4}:{A_+7}], v0, {WSR}, s74 offen offset:1024"])
    for k in range(8): a(f"v_mov_b32 v{AQ+k}, 0")
    a(f"s_cmp_eq_u32 s73, 63")
    a(f"s_cbranch_scc1 {done}")
    a(f"s_add_u32 s72, s73, 2")
    a(f"s_and_b32 s72, s72, 3")
    a(f"s_lshl_b32 s72, s72, 14")
    for k in range(4): a(f"v_mov_b32 v{S_+k}, -1")
    a("s_waitcnt vmcnt(0)")
    poll_prep(a, range(P, P+4*n))
    a("s_barrier")
    km_store()
    if W == 0: st_intra(a, [f"buffer_store_dword v{S_}, v11, {WSR}, s72 offen"])
    elif W < 3: st_intra(a, [f"buffer_store_dwordx4 v[{S_}:{S_+3}], v11, {WSR}, s72 offen"])
    a(f"s_add_u32 s73, s73, 1")
    a("s_waitcnt vmcnt(0)")
    a("s_barrier")
    a(f"s_branch {top}")
    a.label(done)
    km_store()
    if cfg.get("ts"): ts_dump(a, cfg, 10)
    a("s_waitcnt vmcnt(0)")
    a("s_barrier")
    a("s_endpgm")

def vo_prefetch(a, cfg, sseg):
    if "wait_kv" in cfg: cfg["wait_kv"](a, sseg)
    a(f"s_mul_i32 s74, s{sseg}, {0 if cfg.get('pf_hot') else 32*12*1024}")
    a(f"s_and_b32 s75, s{sseg}, 1")
    a(f"s_lshl_b32 s75, s75, 13")
    a(f"s_lshl_b32 s79, s66, 10")
    a(f"s_add_u32 s75, s75, s79")
    a(f"s_add_u32 s75, s75, {L_VT}")
    a(f"s_mov_b32 m0, s75")
    a(f"s_add_u32 s79, s74, s82")
    a(f"buffer_load_dwordx4 v7, {WSR}, s79 offen sc1 lds")
    a(f"s_add_u32 s75, s75, 4096")
    a(f"s_mov_b32 m0, s75")
    a(f"s_add_u32 s79, s74, s83")
    a(f"buffer_load_dwordx4 v7, {WSR}, s79 offen sc1 lds")

def read_near(a, cfg, off):
    lcl = a.newlabel("call"); lcd = a.newlabel("cald")
    a(f"v_mov_b32 v40, 0")
    a(f"s_mov_b32 s76, 1000000")
    a(f"s_mov_b32 s74, 0")
    a.label(lcl)
    a(f"buffer_load_dword v41, v40, {cfg['dsr']}, s{S_RND} offen offset:{off} sc1")
    a(f"s_sub_u32 s76, s76, 1")
    a(f"s_cbranch_scc1 {lcd}")
    a("s_waitcnt vmcnt(0)")
    a(f"v_readfirstlane_b32 s74, v41")
    a(f"s_cmp_eq_u32 s74, 0")
    a(f"s_cbranch_scc1 {lcl}")
    a.label(lcd)
    a(f"s_lshr_b32 s74, s74, 1")
    a(f"s_lshl_b32 s{S_NEAR}, s74, 13")

def gen_vo_setup(a, cfg):
    read_near(a, cfg, 132)
    vo_addr_setup(a)
    a("s_mov_b32 s73, 0")
    a(f"s_mov_b32 s77, {f32hex(C_EXP)}")
    a(f"v_mov_b32 v15, 0")
    a(f"s_mul_i32 s82, s62, 12")
    a(f"s_lshr_b32 s74, s66, 1")
    a(f"s_mul_i32 s74, s74, 6")
    a(f"s_add_u32 s83, s82, s74")
    a(f"s_lshl_b32 s74, s61, 1")
    a(f"s_add_u32 s83, s83, s74")
    a(f"s_and_b32 s74, s66, 1")
    a(f"s_add_u32 s83, s83, s74")
    a(f"s_lshl_b32 s83, s83, 10")
    a(f"s_add_u32 s83, s83, {KF}")
    a(f"s_lshl_b32 s74, s61, 2")
    a(f"s_add_u32 s82, s82, s74")
    a(f"s_add_u32 s82, s82, s66")
    a(f"s_lshl_b32 s82, s82, 10")
    a(f"s_add_u32 s82, s82, {VF}")
    if "kv_setup" in cfg: cfg["kv_setup"](a)
    vo_prefetch(a, cfg, 73)
    a("s_waitcnt vmcnt(0)")
    a("s_barrier")

def pk_add(a, d, x, y):
    a(f"v_pk_add_f32 v[{d}:{d+1}], v[{x}:{x+1}], v[{y}:{y+1}]")

def gen_vo_loop(a, cfg, hasB):
    F = 40
    PL = 16
    VT = 32
    AV = 36
    VMP = 14
    T = 40
    PB = 48
    PM = 52
    D, Z = 56, 60
    ONE = 64
    ACC = 64
    OP = 44
    a.c("==== VO wave main loop")
    top = a.newlabel("voloop"); done = a.newlabel("vodone")
    a.label(top)
    for k in range(4): a(f"v_mov_b32 v{AV+k}, 0")
    a(f"s_and_b32 s72, s73, 3")
    a(f"s_lshr_b32 s85, s72, 1")
    a(f"s_lshl_b32 s72, s72, 14")
    a(f"s_and_b32 s75, s73, 1")
    a(f"s_mul_i32 s78, s75, {XR_SLOT}")
    if cfg.get("xfresh"):
        a(f"s_mul_i32 s74, s73, 43691")
        a(f"s_lshr_b32 s74, s74, 18")
        a(f"s_mul_i32 s78, s74, 6")
        a(f"s_sub_u32 s78, s73, s78")
        a(f"s_mul_i32 s78, s78, {XR_SLOT}")
        a(f"s_lshl_b32 s74, s74, 22")
        a(f"s_add_u32 s78, s78, s74")
        a(f"s_add_u32 s78, s78, {0xA200000 - XR}")
        a(f"s_mov_b32 s85, 0")
    a(f"s_lshl_b32 s75, s75, 13")
    a(f"s_lshl_b32 s74, s66, 10")
    a(f"s_add_u32 s75, s75, s74")
    a(f"v_add_u32 v{VT}, s75, v7")
    a(f"ds_read_b128 v[{VT}:{VT+3}], v{VT} offset:{L_VT}")
    a(f"s_add_u32 s84, s73, 1")
    a("s_waitcnt vmcnt(0)")
    poll_prep(a, range(PL, PL+15))
    a("s_barrier")
    if "pub" in cfg: cfg["pub"](a, 73)
    lnp = a.newlabel("nopf")
    a(f"s_cmp_eq_u32 s73, 63")
    a(f"s_cbranch_scc1 {lnp}")
    vo_prefetch(a, cfg, 84)
    if hasB:
        lc = a.newlabel("cal")
        a(f"s_cmp_eq_u32 s73, 4")
        a(f"s_cbranch_scc0 {lc}")
        read_near(a, cfg, 136)
        a.label(lc)
    a.label(lnp)
    for t in range(10):
        a(f"ds_read_b128 v[{F+4*t}:{F+4*t+3}], v7 offset:{t*1024}")
    a("s_waitcnt lgkmcnt(0)")
    a("s_barrier")
    for t in range(10): smf(a, AV, F+4*t, WV+8*t, 12)
    sloads = [f"buffer_load_dwordx4 v[{PL+4*k}:{PL+4*k+3}], v2, {WSR}, s72 offen offset:{k*1024} sc1" for k in range(3)] + \
             [f"buffer_load_dword v{PL+12+k}, v3, {WSR}, s72 offen offset:{k*256} sc1" for k in range(3)]
    a("s_nop 7")
    a(f"v_add_f32 v{AV}, v{AV}, v{AV+1}")
    a(f"v_add_f32 v{AV+2}, v{AV+2}, v{AV+3}")
    a(f"v_cvt_pk_bf16_f32 v{VMP}, v{AV}, v{AV+2}")
    a(f"s_cmp_eq_u32 s73, 63")
    a(f"s_cbranch_scc1 {done}")
    for k in range(4): a(f"v_mov_b32 v{ONE+k}, 0x3f803f80")
    a(f"v_mov_b32 v{PM+1}, 0")
    stamp(a, cfg, 0)
    if cfg.get("sdelay"): a(f"s_sleep {cfg['sdelay']}")
    mx, tmp = T+5, T+6
    lp = a.newlabel("sp"); ld = a.newlabel("spd")
    a(f"s_mov_b32 s76, {POLL_MAX}")
    a.label(lp)
    for x in sloads: a(x)
    a(f"s_sub_u32 s76, s76, 1")
    a(f"s_cbranch_scc1 {ld}")
    a(f"s_waitcnt vmcnt({6*(POLL_DEPTH-1)})")
    maxtree(a, range(PL, PL+15), tmp)
    pk_add(a, T, PL, PL+4); pk_add(a, T+2, PL+2, PL+6)
    a(f"v_cmp_eq_u32 vcc, -1, v{tmp}")
    a(f"s_cbranch_vccnz {lp}")
    a.label(ld)
    stamp(a, cfg, 1)
    a(f"v_add_f32 v{T+4}, v{PL+12}, v{PL+13}")
    pk_add(a, T, T, PL+8); pk_add(a, T+2, T+2, PL+10)
    a(f"v_add_f32 v{T+4}, v{T+4}, v{PL+14}")
    a(f"v_max3_f32 v{mx}, v{T}, v{T+1}, v{T+2}")
    a(f"v_max3_f32 v{mx}, v{mx}, v{T+3}, v{T+4}")
    a("s_nop 1")
    a(f"v_max_f32_dpp v{mx}, v{mx}, v{mx} row_ror:8 row_mask:0xf bank_mask:0xf")
    a(f"v_mov_b32 v{tmp}, v{mx}")
    a("s_nop 1")
    a(f"v_permlane16_swap_b32 v{mx}, v{tmp}")
    a(f"v_max_f32 v{mx}, v{mx}, v{tmp}")
    a(f"v_mov_b32 v{tmp}, v{mx}")
    a("s_nop 1")
    a(f"v_permlane32_swap_b32 v{mx}, v{tmp}")
    a(f"v_max_f32 v{mx}, v{mx}, v{tmp}")
    a(f"v_mul_f32 v{mx}, s77, v{mx}")
    for r in (4, 0, 1, 2, 3): a(f"v_fma_f32 v{T+r}, v{T+r}, s77, -v{mx}")
    for r in (4, 0, 1, 2, 3): a(f"v_exp_f32 v{T+r}, v{T+r}")
    a(f"v_mov_b32_dpp v{tmp}, v{T+4} row_ror:8 row_mask:0xf bank_mask:0xf")
    a(f"v_cvt_pk_bf16_f32 v{PB}, v{T}, v{T+1}")
    a(f"v_cvt_pk_bf16_f32 v{PB+1}, v{T+2}, v{T+3}")
    a(f"v_cvt_pk_bf16_f32 v{PM}, v{T+4}, v{tmp}")
    a(f"v_mov_b32_dpp v{PB+2}, v{PB} row_ror:8 row_mask:0xf bank_mask:0xf")
    a(f"v_mov_b32_dpp v{PB+3}, v{PB+1} row_ror:8 row_mask:0xf bank_mask:0xf")
    a(f"v_mfma_f32_16x16x16_bf16 v[{Z}:{Z+3}], v[{ONE}:{ONE+1}], v[{PM}:{PM+1}], 0")
    a(f"v_mfma_f32_16x16x16_bf16 v[{D}:{D+3}], v[{VMP}:{VMP+1}], v[{PM}:{PM+1}], 0")
    a(f"v_mfma_f32_16x16x32_bf16 v[{Z}:{Z+3}], v[{ONE}:{ONE+3}], v[{PB}:{PB+3}], v[{Z}:{Z+3}]")
    a(f"v_mfma_f32_16x16x32_bf16 v[{D}:{D+3}], v[{VT}:{VT+3}], v[{PB}:{PB+3}], v[{D}:{D+3}]")
    a("s_nop 6")
    a(f"v_rcp_f32 v{T+2}, v{Z}")
    a("s_nop 0")
    a(f"v_mov_b32 v{T+3}, v{T+2}")
    a(f"v_pk_mul_f32 v[{D}:{D+1}], v[{D}:{D+1}], v[{T+2}:{T+3}]")
    a(f"v_pk_mul_f32 v[{D+2}:{D+3}], v[{D+2}:{D+3}], v[{T+2}:{T+3}]")
    a(f"v_cvt_pk_bf16_f32 v{T}, v{D}, v{D+1}")
    a(f"v_cvt_pk_bf16_f32 v{T+1}, v{D+2}, v{D+3}")
    a(f"v_min_u32 v{T}, -2, v{T}")
    a(f"v_min_u32 v{T+1}, -2, v{T+1}")
    st_intra(a, [f"buffer_store_dwordx2 v[{T}:{T+1}], v4, {WSR}, s72 offen"])
    stamp(a, cfg, 2)
    def housekeeping():
        a(f"s_mul_i32 s74, s73, {32*12*256}")
        a(f"s_add_u32 s79, s73, 2")
        a(f"s_and_b32 s79, s79, 3")
        a(f"s_lshl_b32 s79, s79, 14")
        a(f"s_add_u32 s81, s73, 3")
        a(f"s_and_b32 s81, s81, 3")
        a(f"s_lshl_b32 s81, s81, 14")
        for k in range(2): a(f"v_mov_b32 v{D+k}, -1")
        st_intra(a, [f"buffer_store_dword v{VMP}, v13, {WSR}, s74 offen",
                     f"buffer_store_dwordx2 v[{D}:{D+1}], v4, {WSR}, s79 offen"] +
                    ([f"buffer_store_dword v{D}, v11, {WSR}, s81 offen"] if hasB else []))
    if not hasB:
        housekeeping()
        a("s_barrier")
        a("s_barrier")
    else:
        poll_prep(a, range(OP, OP+12))
        for k in range(16): a(f"v_mov_b32 v{ACC+k}, 0")
        a(f"s_add_u32 s80, s{S_NEAR}, s78")
        if cfg.get("odelay"): a(f"s_sleep {cfg['odelay']}")
        poll(a, [f"buffer_load_dwordx4 v[{OP+4*k}:{OP+4*k+3}], v5, {WSR}, s72 offen offset:{k*1024} sc1" for k in range(3)],
             range(OP, OP+12), T+2, 76)
        stamp(a, cfg, 3)
        def epi(u):
            return [f"v_add_f32 v{ACC+4*u}, v{ACC+4*u}, v{ACC+4*u+1}\nv_add_f32 v{ACC+4*u+2}, v{ACC+4*u+2}, v{ACC+4*u+3}",
                    f"ds_write_b32 v6, v{ACC+4*u} offset:{u*2048}\nds_write_b32 v6, v{ACC+4*u+2} offset:{u*2048+64}"]
        seq = []
        for u in range(4):
            for tp in range(3): seq.append(("m", u, tp))
        out = []
        for i, (_, u, tp) in enumerate(seq):
            smf(a, ACC+4*u, OP+4*tp, WO + (tp*4+u)*8, 12)
            if 3 <= i <= 6: a("s_nop 0")
            if i == 6: a(epi(0)[0])
            if i == 7: a(epi(0)[1])
            if i == 9: a(epi(1)[0])
            if i == 10: a(epi(1)[1])
        a("s_nop 0")
        a(epi(2)[0]); a(epi(2)[1])
        a("s_nop 2")
        a(epi(3)[0]); a(epi(3)[1])
        a("s_waitcnt lgkmcnt(0)")
        stamp(a, cfg, 7)
        a("s_barrier")
        stamp(a, cfg, 8)
        R0 = 56
        a(f"ds_read_b128 v[{R0}:{R0+3}], v8")
        a(f"ds_read_b128 v[{R0+4}:{R0+7}], v8 offset:1024")
        a(f"s_xor_b32 s87, s85, 1")
        a("s_waitcnt vmcnt(0)")
        for r in range(PL, PL+8): a(f"v_mov_b32 v{r}, s87")
        a("s_waitcnt lgkmcnt(0)")
        pk_add(a, R0, R0, R0+4); pk_add(a, R0+2, R0+2, R0+6)
        a("s_nop 1")
        a(f"v_permlane32_swap_b32 v{R0}, v{R0+2}")
        a(f"v_permlane32_swap_b32 v{R0+1}, v{R0+3}")
        pk_add(a, R0, R0, R0+2)
        for r in range(2): a(f"v_bfi_b32 v{R0+r}, 1, s85, v{R0+r}")
        a(f"buffer_store_dwordx2 v[{R0}:{R0+1}], v9, {WSR}, s80 offen sc1")
        stamp(a, cfg, 4)
        for r in range(PL+8, PL+16): a(f"v_mov_b32 v{r}, s87")
        D = 60
        housekeeping()
        a(f"s_add_u32 s81, s73, 1")
        a(f"s_and_b32 s81, s81, 3")
        a(f"s_lshl_b32 s81, s81, 14")
        lxs = a.newlabel("xs")
        if LAYB:
            a(f"s_cmp_lt_u32 s66, 2")
            a(f"s_cbranch_scc0 {lxs}")
        if cfg.get("xdelay"): a(f"s_sleep {cfg['xdelay']}")
        poll_tag(a, [f"buffer_load_dwordx4 v[{PL+4*k}:{PL+4*k+3}], v10, {WSR}, s80 offen offset:{k*1024} sc1" for k in range(4)],
             list(range(PL, PL+16)), T, 76, 85, depth=cfg.get("xdepth", 3))
        stamp(a, cfg, 5)
        X0 = 64
        pk_add(a, X0, PL, PL+4); pk_add(a, X0+2, PL+2, PL+6)
        pk_add(a, X0+4, PL+8, PL+12); pk_add(a, X0+6, PL+10, PL+14)
        pk_add(a, X0, X0, X0+4); pk_add(a, X0+2, X0+2, X0+6)
        a("s_nop 1")
        a(f"v_permlane32_swap_b32 v{X0}, v{X0+2}")
        a(f"v_permlane32_swap_b32 v{X0+1}, v{X0+3}")
        pk_add(a, X0, X0, X0+2)
        a(f"v_cvt_pk_bf16_f32 v{T}, v{X0}, v{X0+1}")
        a(f"v_min_u32 v{T}, -2, v{T}")
        st_intra(a, [f"buffer_store_dword v{T}, v11, {WSR}, s81 offen"])
        a.label(lxs)
        a("s_barrier")
        stamp(a, cfg, 6)
    a(f"s_add_u32 s73, s73, 1")
    a(f"s_branch {top}")
    a.label(done)
    a(f"s_mul_i32 s74, s73, {32*12*256}")
    st_intra(a, [f"buffer_store_dword v{VMP}, v13, {WSR}, s74 offen"])
    if cfg.get("ts"): ts_dump(a, cfg, 10)
    a("s_waitcnt vmcnt(0)")
    a("s_barrier")
    if "pub" in cfg: cfg["pub"](a, 84)
    a("s_endpgm")

def gen_chain_main(a, cfg):
    global STATIC_MODE
    a.label("L_chain_code")
    lvo = a.newlabel("chvo")
    a(f"s_cmp_lt_u32 s{S_WAVE}, 4")
    a(f"s_cbranch_scc0 {lvo}")
    gen_qk_setup(a, cfg)
    labs = {(m, w): a.newlabel(f"qk{m}{w}") for m in (0, 1) for w in range(4)}
    a(f"s_lshl_b32 s63, s{S_MODE}, 2")
    a(f"s_add_u32 s63, s63, s{S_WAVE}")
    for (m, w), l in labs.items():
        if (m, w) == (0, 0): continue
        a(f"s_cmp_eq_u32 s63, {4*m+w}")
        a(f"s_cbranch_scc1 {l}")
    for (m, w), l in labs.items():
        a.label(l)
        STATIC_MODE = m
        gen_qk_loop(a, cfg, w)
    STATIC_MODE = None
    a.label(lvo)
    gen_vo_setup(a, cfg)
    labs = {(m, b): a.newlabel(f"vo{m}{b}") for m in (0, 1) for b in (1, 0)}
    a(f"s_cmp_lt_u32 s{S_IDX}, 10")
    a(f"s_cselect_b32 s63, 1, 0")
    a(f"s_lshl_b32 s64, s{S_MODE}, 1")
    a(f"s_add_u32 s63, s63, s64")
    for (m, b), l in labs.items():
        if (m, b) == (0, 1): continue
        a(f"s_cmp_eq_u32 s63, {2*m+b}")
        a(f"s_cbranch_scc1 {l}")
    for (m, b), l in labs.items():
        a.label(l)
        STATIC_MODE = m
        gen_vo_loop(a, cfg, bool(b))
    STATIC_MODE = None
```

```python
KNAME = "recurrent_scan__memory_aug_recurrent_mem_tr__glu_gated_bilinear__prompt_kernel"

XN = 0x0000000
KF = 0x0400000
VF = 0x1C00000
OF = 0x3400000
KM = 0x4C00000
VM = 0x5800000
HF = 0x5E00000
GB = 0x6400000
PO = 0x6A00000
SY = 0x9200000
XR = SY + 0x000000
XR_SLOT = 0x50000
CAL = SY + 0x0A0000
SR = SY + 0x200000
OR_ = SY + 0x280000
MR = SY + 0x300000
FLI = SY + 0x380000
FLX = SY + 0x388000
FL2 = SY + 0x390000
KMF = FL2 + 64*128
FLQ = FLI + 0x1000
KVR = FLI + 0x800
MEMDBG = SY + 0x400000
TSDBG = SY + 0x600000
KM2 = 0xA000000
VM2 = 0xAC00000
WS_BYTES = 268435456
OOB = 0x40000000

class Asm:
    def __init__(self):
        self.lines = []
        self.nlab = 0
    def __call__(self, s):
        for l in s.strip("\n").split("\n"):
            self.lines.append("    " + l.strip())
    def label(self, l):
        self.lines.append(l + ":")
    def newlabel(self, p="L"):
        self.nlab += 1
        return f"{p}_{self.nlab}"
    def c(self, s):
        self.lines.append("    ; " + s)
    def text(self):
        return "\n".join(self.lines) + "\n"

def vr(b, n=1):
    return f"v{b}" if n == 1 else f"v[{b}:{b+n-1}]"
def sr(b, n=1):
    return f"s{b}" if n == 1 else f"s[{b}:{b+n-1}]"

S_X, S_MEM0, S_WQ, S_WK, S_WV, S_WO, S_SEG, S_BX, S_WG, S_WU, S_WD, S_OUT, S_DBG, S_WSP = [16 + 2*i for i in range(14)]
SRD_WS = 44
SRD_W = 48
SRD_M = 52
SRD_D = 56
S_WAVE = 3
S_RND = 10
S_PHYS = 14
S_GRP = 4
S_IDX = 5
S_NEAR = 7
S_MODE = 6

def srd(a, d, base, nbytes):
    a(f"s_mov_b32 s{d}, s{base}")
    a(f"s_and_b32 s{d+1}, s{base+1}, 0xffff")
    a(f"s_mov_b32 s{d+2}, {hex(nbytes)}")
    a(f"s_mov_b32 s{d+3}, 0x00020000")
```

```python
from common import *
import chain, bulk

HEADER = """; generated by gen/top.py
; @launch grid=(256,1,1) block=(512,1,1) lds=163840
.amdgcn_target "amdgcn-amd-amdhsa--gfx950"
.text
.globl {k}
.p2align 8
.type {k},@function
{k}:
"""
FOOTER = """
.section .rodata,"a"
.p2align 6
.amdhsa_kernel {k}
  .amdhsa_next_free_vgpr 256
  .amdhsa_next_free_sgpr 102
  .amdhsa_accum_offset 256
  .amdhsa_group_segment_fixed_size 0
  .amdhsa_kernarg_size 112
  .amdhsa_user_sgpr_count 2
  .amdhsa_user_sgpr_kernarg_segment_ptr 1
  .amdhsa_system_sgpr_workgroup_id_x 1
.end_amdhsa_kernel
"""
DSR = f"s[{SRD_D}:{SRD_D+3}]"

REMAP = True
def entry(a):
    a("s_cmp_ge_u32 s2, 256")
    a("s_cbranch_scc1 L_exit")
    a("s_load_dwordx16 s[16:31], s[0:1], 0")
    a("s_load_dwordx8 s[32:39], s[0:1], 64")
    a("s_load_dwordx4 s[40:43], s[0:1], 96")
    a("v_lshrrev_b32 v2, 6, v0")
    a("v_and_b32 v1, 63, v0")
    a(f"v_readfirstlane_b32 s{S_WAVE}, v2")
    a(f"s_mov_b32 s{S_PHYS}, s2")
    if REMAP:
        a("s_and_b32 s60, s2, 7")
        a("s_lshr_b32 s61, s2, 3")
        a("s_and_b32 s62, s60, 3")
        a("s_lshl_b32 s62, s62, 1")
        a("s_bfe_u32 s63, s61, 0x10002")
        a("s_and_b32 s64, s61, 3")
        a("s_lshr_b32 s65, s61, 3")
        a("s_cmp_lt_u32 s60, 4")
        a("s_cbranch_scc0 L_rm_bulk")
        a("s_cmp_lt_u32 s61, 24")
        a("s_cbranch_scc0 L_rm_q")
        a("s_cmp_ge_u32 s61, 12")
        a("s_cselect_b32 s63, 1, 0")
        a("s_mul_i32 s64, s63, 12")
        a(f"s_sub_u32 s{S_IDX}, s61, s64")
        a("s_branch L_rm_done")
        a.label("L_rm_q")
        a(f"s_add_u32 s{S_IDX}, s64, 28")
        a("s_branch L_rm_done")
        a.label("L_rm_bulk")
        a("s_lshl_b32 s66, s65, 2")
        a("s_add_u32 s66, s66, 12")
        a(f"s_add_u32 s{S_IDX}, s66, s64")
        a.label("L_rm_done")
        a(f"s_add_u32 s{S_GRP}, s62, s63")
        a(f"s_lshl_b32 s2, s{S_IDX}, 3")
        a(f"s_add_u32 s2, s2, s{S_GRP}")
    else:
        a(f"s_and_b32 s{S_GRP}, s2, 7")
        a(f"s_lshr_b32 s{S_IDX}, s2, 3")
    a("s_waitcnt lgkmcnt(0)")
    srd(a, SRD_WS, S_WSP, WS_BYTES)
    srd(a, SRD_D, S_DBG, 256)

VA = 252

def arrive_issue(a, vb):
    l = a.newlabel("arr")
    a(f"s_cmp_eq_u32 s{S_WAVE}, 0")
    a(f"s_cbranch_scc0 {l}")
    a("s_getreg_b32 s12, hwreg(HW_REG_XCC_ID)")
    a("s_and_b32 s12, s12, 15")
    a("s_cmp_gt_u32 s12, 7")
    a(f"s_cselect_b32 s13, s{S_PHYS}, 0")
    a("s_lshr_b32 s13, s13, 3")
    a("s_add_u32 s12, s12, s13")
    a(f"s_sub_u32 s12, s12, s{S_PHYS}")
    a("s_and_b32 s12, s12, 7")
    a("s_mul_i32 s13, s12, s12")
    a("s_lshl_b32 s12, s12, 9")
    a("s_or_b32 s12, s12, 1")
    a(f"s_mov_b32 s10, s12")
    a(f"s_mov_b32 s11, s13")
    a(f"v_mov_b32 v{vb}, s12")
    a(f"v_mov_b32 v{vb+1}, s13")
    a(f"v_mov_b32 v{vb+2}, {OOB}")
    a("v_cmp_eq_u32 vcc, 0, v1")
    a("s_nop 1")
    a(f"v_cndmask_b32 v{vb+2}, v{vb+2}, v1, vcc")
    a(f"buffer_atomic_add_x2 v[{vb}:{vb+1}], v{vb+2}, {DSR}, 0 offen sc1")
    bulk.trace_pt(a, 108, 16)
    a.label(l)

def master(a):
    l = a.newlabel("ms"); d = a.newlabel("msd"); o = a.newlabel("mso")
    a(f"s_cmp_eq_u32 s2, 251")
    a(f"s_cbranch_scc0 {o}")
    a(f"s_cmp_eq_u32 s{S_WAVE}, 0")
    a(f"s_cbranch_scc0 {o}")
    a(f"v_mov_b32 v2, 0")
    a(f"s_mov_b32 s76, 1000000")
    a.label(l)
    a(f"buffer_load_dwordx2 v[4:5], v2, {DSR}, 0 offen sc1")
    a("s_sub_u32 s76, s76, 1")
    a(f"s_cbranch_scc1 {d}")
    a("s_waitcnt vmcnt(0)")
    a(f"v_readfirstlane_b32 s63, v4")
    a(f"v_readfirstlane_b32 s64, v5")
    a("s_and_b32 s65, s63, 511")
    a("s_cmp_eq_u32 s65, 256")
    a(f"s_cbranch_scc1 {d}")
    a("s_sleep 4")
    a(f"s_branch {l}")
    a.label(d)
    a("s_lshr_b32 s63, s63, 9")
    a("s_mul_i32 s63, s63, s63")
    a("s_lshl_b32 s64, s64, 8")
    a("s_cmp_eq_u32 s63, s64")
    a("s_cselect_b32 s63, 1, 2")
    a(f"v_mov_b32 v4, s63")
    a(f"buffer_store_dword v4, v2, {DSR}, 0 offen offset:128 sc1")
    bulk.trace_pt(a, 107, 16)
    a.label(o)

def wait_go(a, vt=8, sleep=8):
    l = a.newlabel("wa"); d = a.newlabel("wad"); o = a.newlabel("wao")
    a(f"v_mov_b32 v{vt}, 0")
    a(f"s_cmp_eq_u32 s{S_WAVE}, 0")
    a(f"s_cbranch_scc0 {o}")
    a(f"s_mov_b32 s76, 1000000")
    a.label(l)
    a(f"buffer_load_dword v{vt+1}, v{vt}, {DSR}, 0 offen offset:128 sc1")
    a("s_sub_u32 s76, s76, 1")
    a(f"s_cbranch_scc1 {d}")
    a("s_waitcnt vmcnt(0)")
    a(f"v_readfirstlane_b32 s63, v{vt+1}")
    a("s_cmp_lg_u32 s63, 0")
    a(f"s_cbranch_scc1 {d}")
    a(f"s_sleep {sleep}")
    a(f"s_branch {l}")
    a.label(d)
    a("s_waitcnt vmcnt(0)")
    a(f"ds_write_b32 v{vt}, v{vt+1}")
    a("s_waitcnt lgkmcnt(0)")
    a.label(o)
    a("s_barrier")
    a(f"ds_read_b32 v{vt+1}, v{vt}")
    a("s_waitcnt lgkmcnt(0)")
    a(f"v_readfirstlane_b32 s63, v{vt+1}")
    a("s_cmp_lg_u32 s63, 1")
    a(f"s_cselect_b32 s{S_MODE}, 1, 0")
    a("s_barrier")

def arrive_now(a, vb=12):
    a("s_waitcnt vmcnt(0)")
    a("s_barrier")
    arrive_issue(a, vb)


def build_full(cfg, path):
    cfg = dict(cfg)
    roles = cfg.get("roles", {"C","K","V","Q","O","F","E","R","P"})
    a = Asm()
    bulk.TRACE = cfg.get("trace", 0)
    chain.POLL_DEPTH = cfg.get("depth", 2)
    bulk.NOMFMA = bool(cfg.get("nomfma")); bulk.NODMA = bool(cfg.get("nodma"))
    entry(a)
    bulk.trace_pt(a, 100)
    a(f"s_mov_b32 s{S_MODE}, 1")
    bulk.own_flag_intra(a)
    a(f"s_lshl_b32 s63, s2, 7")
    a(f"s_add_u32 s63, s63, {FLX}")
    a(f"s_cmp_lt_u32 s{S_IDX}, 12")
    a(f"s_cselect_b32 s{bulk.S_FLAG}, s{bulk.S_FLAG}, s63")
    a(f"s_lshl_b32 s63, s{S_GRP}, 7")
    a(f"s_lshl_b32 s64, s{S_IDX}, 2")
    a(f"s_add_u32 s63, s63, s64")
    a(f"s_add_u32 s63, s63, {FLQ - 80}")
    a(f"s_lshr_b32 s64, s{S_IDX}, 2")
    a(f"s_cmp_eq_u32 s64, 5")
    a(f"s_cselect_b32 s{bulk.S_FLAG}, s63, s{bulk.S_FLAG}")
    bulk.flag_init(a, bulk.S_FLAG)
    a(f"s_mov_b32 s{S_NEAR}, 0")
    for lim, lab in ((12, "L_chain"), (16, "L_k"), (20, "L_v"), (24, "L_q"), (28, "L_o")):
        a(f"s_cmp_lt_u32 s{S_IDX}, {lim}")
        a(f"s_cbranch_scc1 {lab}")
    a(f"s_cmp_lt_u32 s{S_IDX}, 30")
    a(f"s_cbranch_scc1 L_r")
    a(f"s_cmp_eq_u32 s{S_IDX}, 30")
    a(f"s_cbranch_scc1 L_p")
    a.label("L_idle")
    bulk.gen_e_init(a, DSR)
    arrive_now(a)
    master(a)
    bulk.CAL_WAIT = "C" in roles
    bulk.gen_calib(a, DSR)
    a.label("L_exit")
    a("s_endpgm")
    def role(lab, name, init, pre, main, sleep=8, late=False):
        a.label(lab)
        on = name in roles
        if init is not None or not on:
            if init: init()
            arrive_now(a)
            bulk.HOOK = None
        else:
            bulk.HOOK = lambda: arrive_issue(a, 12)
        if not on:
            a("s_endpgm"); return
        if late:
            wait_go(a, sleep=sleep)
            if not cfg.get("nowait") and cfg.get("lateq", 1):
                a(f"s_and_b32 s60, s{S_IDX}, 3")
                bulk.kv_flag_addr(a, 10)
                a("s_mov_b32 s77, 0")
                a("s_mov_b32 s75, 1")
                bulk.flag_wait_w0(a, 10, 75, 77, 2, sleep=8, ahead=0)
                a("s_barrier")
        bulk.trace_pt(a, 101, 16)
        pre()
        bulk.trace_pt(a, 102, 16)
        if not late: wait_go(a, sleep=sleep)
        bulk.trace_pt(a, 103, 16)
        if cfg.get("force_safe"): a(f"s_mov_b32 s{S_MODE}, 1")
        main()
    ln = lambda: bulk.gen_ln(a)
    def kvpre(isV):
        a(f"s_sub_u32 s15, s2, 96")
        a(f"s_lshl_b32 s63, s15, 7")
        a(f"s_add_u32 s63, s63, {FL2}")
        bulk.flag_init(a, 63)
        bulk.gen_kv_pre(a, cfg, isV)
    role("L_k", "K", None, lambda: kvpre(False), lambda: bulk.gen_kv_main(a, cfg, False, "L_ph2"), 2)
    role("L_v", "V", None, lambda: kvpre(True), lambda: bulk.gen_kv_main(a, cfg, True, "L_ph2"), 2)
    role("L_q", "Q", ln, lambda: bulk.gen_q_pre(a, cfg), lambda: bulk.gen_q_main(a, cfg), late=True)
    role("L_o", "O", ln, lambda: bulk.gen_o_pre(a, cfg), lambda: bulk.gen_o_main(a, cfg), late=True)
    role("L_r", "R", lambda: bulk.gen_relay_init(a, "R"), lambda: None, lambda: bulk.gen_relay_main(a, cfg), 8)
    role("L_p", "P", lambda: bulk.gen_relay_init(a, "P"), lambda: None, lambda: bulk.gen_pref_main(a, cfg), 2)
    a.label("L_ph2")
    bulk.HOOK = None
    if "F" not in roles:
        a("s_endpgm")
    else:
        a(f"s_lshl_b32 s{bulk.S_FLAG}, s15, 7")
        a(f"s_add_u32 s{bulk.S_FLAG}, s{bulk.S_FLAG}, {FL2}")
        if bulk.TRACE: a(f"s_add_u32 s2, s15, 256")
        n1 = 12*bulk.NF1; n2 = n1 + 5*bulk.NF2
        a(f"s_cmp_lt_u32 s15, {n1}")
        a("s_cbranch_scc0 L_nf1")
        a("s_mul_i32 s9, s15, 43")
        a("s_lshr_b32 s9, s9, 9")
        a("s_mul_i32 s60, s9, 12")
        a("s_sub_u32 s60, s15, s60")
        bulk.gen_f1_pre(a, cfg)
        bulk.gen_f1_main(a, cfg, "L_ph3")
        a.label("L_nf1")
        a(f"s_cmp_lt_u32 s15, {n2}")
        a("s_cbranch_scc0 L_ph3")
        a(f"s_sub_u32 s63, s15, {n1}")
        a("s_mul_i32 s9, s63, 52")
        a("s_lshr_b32 s9, s9, 8")
        a("s_mul_i32 s61, s9, 5")
        a("s_sub_u32 s61, s63, s61")
        bulk.gen_f2_pre(a, cfg)
        bulk.gen_f2_main(a, cfg, "L_ph3")
        a.label("L_ph3")
        if "E" not in roles:
            a("s_endpgm")
        else:
            a("s_sub_u32 s63, 63, s15")
            a(f"s_cmp_ge_u32 s63, {10*bulk.NE}")
            a("s_cbranch_scc1 L_exit")
            a("s_mul_i32 s9, s63, 26")
            a("s_lshr_b32 s9, s9, 8")
            a("s_mul_i32 s60, s9, 10")
            a("s_sub_u32 s60, s63, s60")
            bulk.gen_e_main(a, cfg)
    if not cfg.get("nowait"):
        def kv_setup(a):
            a(f"s_lshl_b32 s63, s{S_GRP}, 7")
            a(f"s_lshl_b32 s64, s60, 3")
            a(f"s_add_u32 s63, s63, s64")
            a(f"s_add_u32 s63, s63, {KVR}")
            a(f"v_min_u32 v0, 1, v1")
            a(f"v_lshlrev_b32 v0, 2, v0")
            a(f"v_add_u32 v0, s63, v0")
            a(f"s_mov_b32 s86, 0")
        def wait_kv(a, sseg):
            a(f"s_add_u32 s87, s{sseg}, 1")
            bulk.flag_wait(a, 0, 87, 86, 40, sleep=1, ahead=3)
        cfg["kv_setup"] = kv_setup; cfg["wait_kv"] = wait_kv
    cfg["dsr"] = DSR
    cfg["pub"] = lambda a, sval: bulk.flag_set(a, bulk.S_FLAG, sval, True, 40, wave=4)
    def cpre():
        chain.gen_chain_init(a, cfg)
        chain.gen_chain_pre(a, cfg)
        chain.gen_weight_load(a, bulk.HOOK)
        if cfg.get("warm", 1): bulk.code_warm(a, "L_chain_code", 12288)
    role("L_chain", "C", None, cpre, lambda: chain.gen_chain_main(a, cfg), 2)
    open(path, "w").write(HEADER.format(k=KNAME) + a.text() + FOOTER.format(k=KNAME))

if __name__ == "__main__":
    import sys, subprocess
    names = []
    def B(n, **kw):
        build_full(dict(kw), f"dev/{n}.s"); names.append(n)
        subprocess.run(["python3", "build.py", f"dev/{n}.s", KNAME, "14"])
    import json
    specs = json.loads(sys.argv[1]) if len(sys.argv) > 1 else {}
    for n, kw in specs.items():
        if "roles" in kw: kw["roles"] = set(kw["roles"])
        B(n, **kw)
```

```python
from common import *
from chain import st_intra, WSR, f32hex, C_EXP
import math

WR = f"s[{SRD_W}:{SRD_W+3}]"
FLAG_SPIN = 4000000
HOOK = None
CAL_WAIT = True
NOMFMA = False
NODMA = False

def wave_sum(a, v, t):
    for sh in (1, 2, 4, 8):
        a("s_nop 1")
        a(f"v_add_f32_dpp v{v}, v{v}, v{v} row_ror:{sh} row_mask:0xf bank_mask:0xf")
    for op in ("v_permlane16_swap_b32", "v_permlane32_swap_b32"):
        a(f"v_mov_b32 v{t}, v{v}")
        a("s_nop 1")
        a(f"{op} v{v}, v{t}")
        a(f"v_add_f32 v{v}, v{v}, v{t}")

def round_bf16(a, d, s):
    a(f"v_cvt_pk_bf16_f32 v{d}, v{s}, v{s}")
    a(f"v_and_b32 v{d}, 0xffff0000, v{d}")

def row_sum16(a, v):
    for sh in (1, 2, 4, 8):
        a("s_nop 1")
        a(f"v_add_f32_dpp v{v}, v{v}, v{v} row_ror:{sh} row_mask:0xf bank_mask:0xf")

def gen_ln(a):
    a.c("==== layernorm")
    srd(a, SRD_M, S_X, 2048*640*2)
    MR_ = f"s[{SRD_M}:{SRD_M+3}]"
    a(f"s_sub_u32 s63, s2, 160")
    a(f"s_lshl_b32 s63, s63, 3")
    a(f"s_add_u32 s63, s63, s{S_WAVE}")
    a(f"s_lshl_b32 s63, s63, 2")
    a(f"s_mul_i32 s64, s63, 1280")
    a(f"v_lshrrev_b32 v3, 4, v1")
    a(f"v_and_b32 v4, 15, v1")
    a(f"v_mul_u32_u24 v2, 1280, v3")
    a(f"v_lshlrev_b32 v5, 4, v4")
    a(f"v_add_u32 v2, v2, v5")
    IN, X, Y = 16, 40, 80
    for k in range(5):
        a(f"buffer_load_dwordx4 v[{IN+4*k}:{IN+4*k+3}], v2, {MR_}, s64 offen offset:{256*k}")
    a(f"v_lshrrev_b32 v5, 2, v4")
    a(f"v_lshlrev_b32 v5, 10, v5")
    a(f"v_and_b32 v6, 3, v4")
    a(f"v_lshlrev_b32 v6, 8, v6")
    a(f"v_lshlrev_b32 v3, 4, v3")
    a(f"v_add3_u32 v5, v5, v6, v3")
    a(f"s_lshr_b32 s64, s63, 4")
    a(f"s_mul_i32 s64, s64, {20*1024}")
    a(f"s_and_b32 s65, s63, 15")
    a(f"s_lshl_b32 s65, s65, 4")
    a(f"s_add_u32 s64, s64, s65")
    if XN: a(f"s_add_u32 s64, s64, {XN}")
    def unpack(dst, src):
        for k in range(20):
            a(f"v_lshlrev_b32 v{dst+2*k}, 16, v{src+k}")
            a(f"v_and_b32 v{dst+2*k+1}, 0xffff0000, v{src+k}")
    def pk(op, d, x, y, z=None):
        a(f"{op} v[{d}:{d+1}], v[{x}:{x+1}], v[{y}:{y+1}]" + (f", v[{z}:{z+1}]" if z is not None else ""))
    a("s_waitcnt vmcnt(0)")
    if TRACE:
        a("s_memrealtime s[94:95]")
        a("s_waitcnt lgkmcnt(0)")
    unpack(X, IN)
    pk("v_pk_add_f32", 8, X, X+2)
    for k in range(2, 20): pk("v_pk_add_f32", 8, 8, X+2*k)
    a(f"v_add_f32 v8, v8, v9")
    row_sum16(a, 8)
    a(f"v_mul_f32 v8, {f32hex(-1.0/640)}, v8")
    a(f"v_mov_b32 v9, v8")
    for k in range(20): pk("v_pk_add_f32", Y+2*k, X+2*k, 8)
    pk("v_pk_mul_f32", 10, Y, Y)
    for k in range(1, 20): pk("v_pk_fma_f32", 10, Y+2*k, Y+2*k, 10)
    a(f"v_add_f32 v10, v10, v11")
    row_sum16(a, 10)
    a(f"v_mul_f32 v10, {f32hex(1.0/640)}, v10")
    round_bf16(a, 10, 10)
    a(f"v_add_f32 v10, {f32hex(1e-5)}, v10")
    round_bf16(a, 10, 10)
    a(f"v_sqrt_f32 v10, v10")
    a("s_nop 0")
    round_bf16(a, 10, 10)
    a(f"v_rcp_f32 v12, v10")
    round_bf16(a, 8, 8)
    a(f"v_mov_b32 v9, v8")
    a(f"v_mov_b32 v13, v12")
    a(f"v_sub_f32 v10, 0, v10")
    a(f"v_mov_b32 v11, v10")
    for k in range(20): pk("v_pk_add_f32", Y+2*k, X+2*k, 8)
    for k in range(20): a(f"v_cvt_pk_bf16_f32 v{IN+k}, v{Y+2*k}, v{Y+2*k+1}")
    unpack(X, IN)
    for k in range(20):
        pk("v_pk_mul_f32", Y+2*k, X+2*k, 12)
        pk("v_pk_fma_f32", X+2*k, Y+2*k, 10, X+2*k)
        pk("v_pk_fma_f32", Y+2*k, X+2*k, 12, Y+2*k)
    for k in range(5):
        for j in range(4): a(f"v_cvt_pk_bf16_f32 v{IN+4*k+j}, v{Y+8*k+2*j}, v{Y+8*k+2*j+1}")
        a(f"buffer_store_dwordx4 v[{IN+4*k}:{IN+4*k+3}], v5, {WSR}, s64 offen sc1")
        a(f"s_add_u32 s64, s64, 4096")
    if TRACE:
        a("s_memrealtime s[96:97]")
        a("s_waitcnt lgkmcnt(0) vmcnt(0)")
        trace_pt(a, 106, 12)
        a(f"s_lshl_b32 s100, s2, 9")
        a(f"s_add_u32 s100, s100, {TSDBG + 104*4}")
        a(f"v_mov_b32 v12, 0")
        a(f"v_mov_b32 v14, s94")
        a(f"v_mov_b32 v15, s96")
        a(f"buffer_store_dwordx2 v[14:15], v12, {WSR}, s100 offen")

def calib_round(a, DSR, line0, dst, n=4):
    a(f"s_mov_b32 s63, {CAL + line0*128}")
    a(f"v_and_b32 v3, 7, v1")
    a(f"v_lshlrev_b32 v3, 7, v3")
    a(f"v_bfe_u32 v4, v1, 3, 1")
    a(f"v_lshlrev_b32 v4, 13, v4")
    a(f"v_add_u32 v3, v3, v4")
    a(f"buffer_store_dword v2, v3, {WSR}, s63 offen sc1")
    a("s_waitcnt vmcnt(0)")
    a("s_mov_b32 s70, -1")
    a("s_mov_b32 s71, -1")
    a(f"s_add_u32 s64, s63, 8192")
    for k in range(n):
        for par in range(2):
            a("s_memtime s[88:89]")
            a("s_waitcnt lgkmcnt(0)")
            a(f"buffer_load_dword v3, v2, {WSR}, s{63+par} offen offset:{128*k} sc1")
            a("s_waitcnt vmcnt(0)")
            a("s_memtime s[90:91]")
            a("s_waitcnt lgkmcnt(0)")
            a("s_sub_u32 s90, s90, s88")
            a(f"s_min_u32 s{70+par}, s{70+par}, s90")
    a("s_cmp_gt_u32 s70, s71")
    a("s_cselect_b32 s64, 2, 1")
    a("v_mov_b32 v3, s64")
    a(f"buffer_store_dword v3, v2, {DSR}, s{S_RND} offen offset:{dst} sc1")

def gen_calib(a, DSR, late):
    l = a.newlabel("ei")
    a(f"s_cmp_eq_u32 s2, 249")
    a(f"s_cbranch_scc0 {l}")
    a(f"s_cmp_eq_u32 s{S_WAVE}, 0")
    a(f"s_cbranch_scc0 {l}")
    a(f"v_mov_b32 v2, 0")
    if not late:
        calib_round(a, DSR, 0, 132, 4)
    else:
        a(f"s_mov_b32 s75, 1")
        a(f"v_mov_b32 v4, {FLI}")
        a(f"s_mov_b32 s77, 0")
        if CAL_WAIT: flag_wait(a, 4, 75, 77, 3, sleep=8, ahead=0)
        calib_round(a, DSR, 8, 136, 6)
    a.label(l)

def code_warm(a, lab_from, nbytes, v=2):
    l = a.newlabel("cwm")
    a("s_getpc_b64 s[88:89]")
    a.label(l)
    a(f"s_add_u32 s88, s88, {lab_from}-{l}")
    a(f"s_addc_u32 s89, s89, 0")
    a(f"v_lshlrev_b32 v{v}, 6, v1")
    for k in range((nbytes + 4095)//4096):
        a(f"global_load_dword v{v+1}, v{v}, s[88:89]")
        a(f"v_add_u32 v{v}, 4096, v{v}")

def gen_e_init(a, DSR):
    l = a.newlabel("ei")
    a(f"s_cmp_eq_u32 s{S_IDX}, 31")
    a(f"s_cbranch_scc0 {l}")
    srd(a, SRD_M, S_MEM0, 8*640*2)
    MR_ = f"s[{SRD_M}:{SRD_M+3}]"
    a(f"s_lshl_b32 s63, s{S_GRP}, 16")
    a(f"s_add_u32 s63, s63, {MR}")
    for k in range(2):
        a(f"v_add_u32 v2, {512*k}, v0")
        a(f"v_bfe_u32 v3, v2, 1, 3")
        a(f"v_mul_u32_u24 v3, 1280, v3")
        a(f"v_lshrrev_b32 v4, 4, v2")
        a(f"v_lshlrev_b32 v4, 5, v4")
        a(f"v_add_u32 v3, v3, v4")
        a(f"v_and_b32 v4, 1, v2")
        a(f"v_lshlrev_b32 v4, 4, v4")
        a(f"v_add_u32 v3, v3, v4")
        a(f"v_lshlrev_b32 v{5+k}, 4, v2")
        a(f"v_mov_b32 v4, {OOB}")
        a(f"v_cmp_gt_u32 vcc, 640, v2")
        a("s_nop 1")
        a(f"v_cndmask_b32 v3, v4, v3, vcc")
        a(f"v_cndmask_b32 v{5+k}, v4, v{5+k}, vcc")
        a(f"buffer_load_dwordx4 v[{16+4*k}:{19+4*k}], v3, {MR_}, 0 offen")
    a("s_waitcnt vmcnt(0)")
    for r in range(16, 24): a(f"v_min_u32 v{r}, -2, v{r}")
    for k in range(2):
        a(f"buffer_store_dwordx4 v[{16+4*k}:{19+4*k}], v{5+k}, {WSR}, s63 offen sc1")
    a.label(l)

def flag_init(a, soff):
    l = a.newlabel("fi")
    a(f"s_cmp_eq_u32 s{S_WAVE}, 0")
    a(f"s_cbranch_scc0 {l}")
    a(f"v_mov_b32 v2, 0")
    a(f"buffer_store_dword v2, v2, {WSR}, s{soff} offen sc1")
    a.label(l)

def flag_set(a, soff, sval, intra, vt, wave=0):
    l = a.newlabel("fs")
    a(f"s_cmp_eq_u32 s{S_WAVE}, {wave}")
    a(f"s_cbranch_scc0 {l}")
    a(f"v_mov_b32 v{vt}, 0")
    a(f"v_mov_b32 v{vt+1}, s{sval}")
    ins = f"buffer_store_dword v{vt+1}, v{vt}, {WSR}, s{soff} offen"
    if intra: st_intra(a, [ins])
    else: a(ins + " sc1")
    if TRACE: trace(a, sval, vt)
    a.label(l)

TRACE = False
def trace(a, sval, vt, const=None):
    a("s_memrealtime s[98:99]")
    a(f"s_lshl_b32 s100, s2, 9")
    if const is None:
        a(f"s_lshl_b32 s101, s{sval}, 2")
        a(f"s_add_u32 s100, s100, s101")
    else:
        a(f"s_add_u32 s100, s100, {const*4}")
    a(f"s_add_u32 s100, s100, {TSDBG}")
    a("s_waitcnt lgkmcnt(0)")
    a(f"v_mov_b32 v{vt+1}, s98")
    a(f"buffer_store_dword v{vt+1}, v{vt}, {WSR}, s100 offen")
    if TRACE == 2:
        a("s_memtime s[98:99]")
        a(f"s_add_u32 s100, s100, {512*512}")
        a("s_waitcnt lgkmcnt(0)")
        a(f"v_mov_b32 v{vt+1}, s98")
        a(f"buffer_store_dword v{vt+1}, v{vt}, {WSR}, s100 offen")

def trace_pt(a, const, vt=2):
    if not TRACE: return
    l = a.newlabel("tp")
    a(f"s_cmp_eq_u32 s{S_WAVE}, 0")
    a(f"s_cbranch_scc0 {l}")
    a(f"v_mov_b32 v{vt}, 0")
    trace(a, None, vt, const)
    a.label(l)

def flag_wait(a, voff, sneed, scache, vt, sleep=2, ahead=3, first=0):
    l = a.newlabel("fw"); d = a.newlabel("fwd")
    a(f"s_cmp_ge_u32 s{scache}, s{sneed}")
    a(f"s_cbranch_scc1 {d}")
    a(f"s_mov_b32 s76, {FLAG_SPIN}")
    a.label(l)
    a(f"buffer_load_dword v{vt}, v{voff}, {WSR}, 0 offen sc1")
    a(f"s_sub_u32 s76, s76, 1")
    a(f"s_cbranch_scc1 {d}")
    a("s_waitcnt vmcnt(0)")
    a(f"v_cmp_gt_u32 vcc, s{sneed}, v{vt}")
    l2 = a.newlabel("fwo")
    a(f"s_cbranch_vccz {l2}")
    if first:
        l3 = a.newlabel("fwf")
        a(f"s_cmp_eq_u32 s76, {FLAG_SPIN-1}")
        a(f"s_cbranch_scc0 {l3}")
        a(f"s_sleep {first}")
        a.label(l3)
    if sleep: a(f"s_sleep {sleep}")
    a(f"s_branch {l}")
    a.label(l2)
    if ahead == "exact":
        a(f"v_readfirstlane_b32 s{scache}, v{vt}")
    elif ahead == "min3":
        a(f"v_readlane_b32 s{scache}, v{vt}, 0")
        a(f"v_readlane_b32 s76, v{vt}, 1")
        a(f"s_min_u32 s{scache}, s{scache}, s76")
        a(f"v_readlane_b32 s76, v{vt}, 2")
        a(f"s_min_u32 s{scache}, s{scache}, s76")
    elif ahead:
        a(f"s_add_u32 s76, s{sneed}, {ahead}")
        a(f"v_cmp_gt_u32 vcc, s76, v{vt}")
        a(f"s_cmp_eq_u64 vcc, 0")
        a(f"s_cselect_b32 s{scache}, s76, s{sneed}")
    else:
        a(f"s_mov_b32 s{scache}, s{sneed}")
    a.label(d)

def flag_wait_w0(a, *args, **kw):
    l = a.newlabel("w0")
    a(f"s_cmp_eq_u32 s{S_WAVE}, 0")
    a(f"s_cbranch_scc0 {l}")
    flag_wait(a, *args, **kw)
    a.label(l)

def stage_weights(a, sptr, nbytes, RS, scol, R, NCH, batch_rows, nbuf, reader, vb=2):
    P = NCH // math.gcd(NCH, 64)
    RG = P*64 // NCH
    groups = batch_rows // RG
    assert batch_rows % RG == 0 and groups % 8 == 0 and R % batch_rows == 0
    gpw = groups // 8
    nb = R // batch_rows
    bbytes = batch_rows*NCH*16
    assert nbuf*bbytes <= 163840
    srd(a, SRD_W, sptr, nbytes)
    M = (65536 + NCH - 1)//NCH
    t0, t1 = vb+P, vb+P+1
    for k in range(P):
        for i in range(64*k, 64*k+64): assert (i*M) >> 16 == i // NCH
        a(f"v_add_u32 v{t0}, {64*k}, v1")
        a(f"v_mul_u32_u24 v{t1}, {M}, v{t0}")
        a(f"v_lshrrev_b32 v{t1}, 16, v{t1}")
        a(f"v_mul_u32_u24 v{vb+k}, {RS - NCH*16}, v{t1}")
        a(f"v_lshlrev_b32 v{t0}, 4, v{t0}")
        a(f"v_add_u32 v{vb+k}, v{vb+k}, v{t0}")
    def issue(b):
        a(f"s_mul_i32 s63, s{S_WAVE}, {P*1024}")
        a(f"s_add_u32 s63, s63, {(b % nbuf)*bbytes}")
        a(f"s_mul_i32 s64, s{S_WAVE}, {RG*RS}")
        a(f"s_add_u32 s64, s64, s{scol}")
        a(f"s_add_u32 s64, s64, {b*batch_rows*RS}")
        for q in range(gpw):
            for k in range(P):
                a(f"s_mov_b32 m0, s63")
                a(f"s_add_u32 s63, s63, {1024 if k < P-1 else 1024 + 7*P*1024}")
                a(f"buffer_load_dwordx4 v{vb+k}, {WR}, s64 offen lds")
            a(f"s_add_u32 s64, s64, {8*RG*RS}")
    per = gpw*P
    global HOOK
    for b in range(min(nbuf, nb)):
        issue(b)
        if HOOK:
            a(f"s_waitcnt vmcnt({per})")
            a("s_barrier")
            HOOK(); HOOK = None
    for b in range(nb):
        out = (min(nb, b+nbuf) - b - 1)*per
        a(f"s_waitcnt vmcnt({min(out, 63)})")
        a("s_barrier")
        reader(b*batch_rows, (b % nbuf)*bbytes)
        a("s_waitcnt lgkmcnt(0)")
        a("s_barrier")
        if b + nbuf < nb: issue(b+nbuf)

def tr_base(a, vd, pitch, rowg, colq, vt):
    a(f"v_lshrrev_b32 v{vt}, 4, v1")
    a(f"v_mul_u32_u24 v{vd}, {rowg*pitch}, v{vt}")
    a(f"v_bfe_u32 v{vt}, v1, 2, 2")
    a(f"v_mul_u32_u24 v{vt}, {pitch}, v{vt}")
    a(f"v_add_u32 v{vd}, v{vd}, v{vt}")
    a(f"v_and_b32 v{vt}, 3, v1")
    a(f"v_mul_u32_u24 v{vt}, {colq}, v{vt}")
    a(f"v_add_u32 v{vd}, v{vd}, v{vt}")

def make_reader(a, vaddr, vtmp, classes, pitch, batch_rows, rowh):
    def reader(row0, lbase):
        for (skip, tiles) in classes:
            l = a.newlabel("rd")
            skip(l)
            a(f"v_add_u32 v{vtmp}, {lbase}, v{vaddr}")
            n = 0
            for ksl in range(batch_rows//32):
                ks = row0//32 + ksl
                for (wb, co) in tiles:
                    for h in range(2):
                        off = (32*ksl + rowh*h)*pitch + co
                        assert off < 65536
                        d = wb + ks*4 + 2*h
                        a(f"ds_read_b64_tr_b16 v[{d}:{d+1}], v{vtmp} offset:{off}")
                        n += 1
                        if n % 8 == 0: a("s_waitcnt lgkmcnt(6)")
            a.label(l)
    return reader

def skip_if_small(a):
    def f(l):
        a(f"s_cmp_lt_u32 s{S_WAVE}, 4"); a(f"s_cbranch_scc0 {l}")
    return f
def skip_if_big(a):
    def f(l):
        a(f"s_cmp_lt_u32 s{S_WAVE}, 4"); a(f"s_cbranch_scc1 {l}")
    return f

def gemm_unit(a, KS, tiles, accs, FR, NF, vlds, lds_off0, w_is_A, extras=None):
    def rd(ks): a(f"ds_read_b128 v[{FR+4*(ks%NF)}:{FR+4*(ks%NF)+3}], v{vlds} offset:{lds_off0+ks*1024}")
    for ks in range(min(NF, KS)): rd(ks)
    for ks in range(KS):
        outstanding = min(KS, ks+NF) - ks - 1
        a(f"s_waitcnt lgkmcnt({outstanding})")
        f = f"v[{FR+4*(ks%NF)}:{FR+4*(ks%NF)+3}]"
        for t, acc in zip(tiles, accs):
            w = f"v[{t+4*ks}:{t+4*ks+3}]"
            c = "0" if ks == 0 else f"v[{acc}:{acc+3}]"
            A_, B_ = (w, f) if w_is_A else (f, w)
            if not NOMFMA: a(f"v_mfma_f32_16x16x32_bf16 v[{acc}:{acc+3}], {A_}, {B_}, {c}")
            else: a("s_nop 3")
        if ks + NF < KS: rd(ks+NF)
        if extras and ks in extras: extras[ks]()

def gemm_stream(a, KS, tiles, units, FR, NF, vlds, w_is_A, extras=None):
    steps = [(u, ks) for u in range(len(units)) for ks in range(KS)]
    N = len(steps)
    def rd(i):
        u, ks = steps[i]
        a(f"ds_read_b128 v[{FR+4*(i%NF)}:{FR+4*(i%NF)+3}], v{vlds} offset:{units[u][1]+ks*1024}")
    for i in range(min(NF, N)): rd(i)
    for i, (u, ks) in enumerate(steps):
        a(f"s_waitcnt lgkmcnt({min(N, i+NF) - i - 1})")
        f = f"v[{FR+4*(i%NF)}:{FR+4*(i%NF)+3}]"
        for t, acc in zip(tiles, units[u][0]):
            w = f"v[{t+4*ks}:{t+4*ks+3}]"
            c = "0" if ks == 0 else f"v[{acc}:{acc+3}]"
            A_, B_ = (w, f) if w_is_A else (f, w)
            a(f"v_mfma_f32_16x16x32_bf16 v[{acc}:{acc+3}], {A_}, {B_}, {c}")
        if i + NF < N: rd(i+NF)
        if extras and i in extras: extras[i]()

def dma_stream(a, ssrc, sdst, step=8192):
    def one():
        a(f"s_mov_b32 m0, s{sdst}")
        a(f"s_add_u32 s{sdst}, s{sdst}, {step}")
        if not NODMA: a(f"buffer_load_dwordx4 v7, {WSR}, s{ssrc} offen sc1 lds")
        a(f"s_add_u32 s{ssrc}, s{ssrc}, {step}")
    return one

FR, NF, ACC = 16, 8, 48
NF1, NF2, NE = 3, 5, 6
S_FLAG = 8
S_U = 73

def kv_flag_addr(a, v):
    a(f"s_lshl_b32 s63, s60, 3")
    a(f"s_add_u32 s63, s63, s{S_GRP}")
    a(f"s_lshl_b32 s63, s63, 7")
    a(f"s_add_u32 s63, s63, {FLX + 96*128}")
    a(f"v_min_u32 v{v}, 1, v1")
    a(f"v_lshlrev_b32 v{v}, 12, v{v}")
    a(f"v_add_u32 v{v}, s63, v{v}")

def st_cross(a, instr):
    if NODMA: return
    for i in instr: a(i + " sc1")

def own_flag_intra(a):
    a(f"s_lshl_b32 s{S_FLAG}, s{S_GRP}, 8")
    a(f"s_lshl_b32 s63, s{S_IDX}, 2")
    a(f"s_add_u32 s{S_FLAG}, s{S_FLAG}, s63")
    a(f"s_add_u32 s{S_FLAG}, s{S_FLAG}, {FLI}")

def dma_frags(a, n_per_wave, ssrc, sdst, stride_waves=True, flags="sc1"):
    a(f"s_lshl_b32 s63, s{S_WAVE}, 10")
    a(f"s_add_u32 s64, s63, s{ssrc}")
    a(f"s_add_u32 s63, s63, s{sdst}")
    for k in range(n_per_wave):
        a(f"s_mov_b32 m0, s63")
        a(f"s_add_u32 s63, s63, 8192")
        if not NODMA: a(f"buffer_load_dwordx4 v7, {WSR}, s64 offen {flags} lds")
        a(f"s_add_u32 s64, s64, 8192")

def proj_weights(a, sptr, ktype, shead):
    W0, W1 = 96, 176
    a(f"s_mul_i32 s62, s{shead}, 384")
    tr_base(a, 10, 384, 8, 16 if ktype else 8, 11)
    l1 = a.newlabel("pw"); l2 = a.newlabel("pw")
    a(f"s_cmp_lt_u32 s{S_WAVE}, 4")
    a(f"s_cbranch_scc0 {l1}")
    a(f"s_lshl_b32 s63, s{S_WAVE}, 6")
    a(f"s_branch {l2}")
    a.label(l1)
    a(f"s_sub_u32 s64, s{S_WAVE}, 4")
    if ktype:
        a(f"s_lshr_b32 s63, s64, 1")
        a(f"s_lshl_b32 s63, s63, 6")
        a(f"s_and_b32 s64, s64, 1")
        a(f"s_lshl_b32 s64, s64, 3")
        a(f"s_add_u32 s63, s63, s64")
    else:
        a(f"s_lshl_b32 s63, s64, 5")
    a(f"s_add_u32 s63, s63, 256")
    a.label(l2)
    a(f"v_add_u32 v10, s63, v10")
    rd = make_reader(a, 10, 11, [(skip_if_small(a), [(W0, 0), (W1, 8 if ktype else 32)]), (skip_if_big(a), [(W0, 0)])], 384, 128, 4)
    stage_weights(a, sptr, 640*6144*2, 12288, 62, 640, 24, 128, 3, rd)

def xn_loop(a, cfg, body_big, ns_big, body_small, ns_small, sfirst, stride, strict, done, pre_bar=None):
    SB = 40*1024
    split = body_small is not None and cfg.get("dmasmall", 0)
    a(f"v_lshlrev_b32 v7, 4, v1")
    if sfirst is None: a(f"s_mov_b32 s{S_U}, 0")
    else: a(f"s_mov_b32 s{S_U}, s{sfirst}")
    a(f"s_mul_i32 s70, s{S_U}, {SB}")
    if XN: a(f"s_add_u32 s70, s70, {XN}")
    a(f"s_mov_b32 s71, 0")
    dma_frags(a, 5, 70, 71)
    a(f"s_add_u32 s70, s70, {stride*SB}")
    a(f"s_mov_b32 s71, {SB}")
    dma_frags(a, 5, 70, 71)
    a(f"s_mov_b32 s79, 0")
    a(f"s_mov_b32 s80, {2*SB}")
    if body_small is not None and cfg.get("kprio", 1):
        lp = a.newlabel("xp")
        a(f"s_cmp_lt_u32 s{S_WAVE}, 4")
        a(f"s_cbranch_scc0 {lp}")
        a("s_setprio 1")
        a.label(lp)
    else:
        a("s_setprio 0")
    sm = a.newlabel("xs"); st_ = a.newlabel("xst"); bar = a.newlabel("xb")
    a("s_waitcnt vmcnt(5)")
    a(f"s_mov_b32 s78, s{S_U}")
    a(f"s_branch {bar}")
    a.label(st_)
    a("s_waitcnt vmcnt(0)")
    a(f"s_mov_b32 s78, s{S_U}")
    a.label(bar)
    a("s_barrier")
    flag_set(a, S_FLAG, 78, False, 2)
    a(f"s_cmp_ge_u32 s{S_U}, 64")
    a(f"s_cbranch_scc1 {done}")
    if pre_bar:
        pre_bar()
        a("s_barrier")
    a(f"s_add_u32 s72, s{S_U}, {2*stride}")
    a(f"s_min_u32 s72, s72, 63")
    a(f"s_mul_i32 s70, s72, {SB}")
    if split:
        a(f"s_and_b32 s63, s{S_WAVE}, 3")
        a(f"s_lshl_b32 s63, s63, 10")
    else:
        a(f"s_lshl_b32 s63, s{S_WAVE}, 10")
    a(f"s_add_u32 s70, s70, s63")
    if XN: a(f"s_add_u32 s70, s70, {XN}")
    a(f"v_add_u32 v8, s79, v7")
    a(f"s_add_u32 s71, s80, s63")
    a(f"s_mov_b32 s80, s79")
    a(f"s_add_u32 s79, s79, {SB}")
    a(f"s_cmp_eq_u32 s79, {3*SB}")
    a(f"s_cselect_b32 s79, 0, s79")
    if split:
        xs = dma_stream(a, 70, 71, 4096)
        ex = None; nd_big = 0
        exs = {1+3*k: xs for k in range(10)}; nd_small = 10
    else:
        xs = dma_stream(a, 70, 71)
        ex = exs = {1+6*k: xs for k in range(5)}; nd_big = nd_small = 5
    def tail(n):
        a(f"s_mov_b32 s78, s{S_U}")
        a(f"s_add_u32 s{S_U}, s{S_U}, {stride}")
        a(f"s_cmp_ge_u32 s{S_U}, 64")
        a(f"s_cbranch_scc1 {st_}")
        if strict:
            a(f"s_cmp_lt_u32 s{S_U}, {strict}")
            a(f"s_cbranch_scc1 {st_}")
        a(f"s_waitcnt vmcnt({n})")
        a(f"s_branch {bar}")
    if body_small is not None:
        a(f"s_cmp_lt_u32 s{S_WAVE}, 4")
        a(f"s_cbranch_scc0 {sm}")
    body_big(ex)
    tail(ns_big + nd_big)
    if body_small is not None:
        a.label(sm)
        body_small(exs)
        tail(ns_small + nd_small)

def cvt4(a, d, s0, s1):
    a(f"v_cvt_pk_bf16_f32 v{d}, v{s0}, v{s0+1}")
    a(f"v_cvt_pk_bf16_f32 v{d+1}, v{s0+2}, v{s0+3}")
    a(f"v_cvt_pk_bf16_f32 v{d+2}, v{s1}, v{s1+1}")
    a(f"v_cvt_pk_bf16_f32 v{d+3}, v{s1+2}, v{s1+3}")

def gen_kv_pre(a, cfg, isV):
    a(f"s_sub_u32 s60, s{S_IDX}, {16 if isV else 12}")
    a(f"s_lshl_b32 s61, s{S_GRP}, 2")
    a(f"s_add_u32 s61, s61, s60")
    proj_weights(a, S_WV if isV else S_WK, 0 if isV else 1, 61)

def gen_kv_main(a, cfg, isV, done):
    W0, W1 = 96, 176
    O_ = 64
    a(f"v_lshlrev_b32 v7, 4, v1")
    a(f"s_mul_i32 s63, s61, {12*1024}")
    a(f"s_add_u32 s63, s63, {VF if isV else KF}")
    l1 = a.newlabel("kv"); l2 = a.newlabel("kv")
    a(f"s_cmp_lt_u32 s{S_WAVE}, 4")
    a(f"s_cbranch_scc0 {l1}")
    a(f"s_lshl_b32 s64, s{S_WAVE}, {11 if isV else 10}")
    a(f"s_branch {l2}")
    a.label(l1)
    a(f"s_sub_u32 s65, s{S_WAVE}, 4")
    if isV:
        a(f"s_add_u32 s64, s65, 8")
        a(f"s_lshl_b32 s64, s64, 10")
    else:
        a(f"s_lshr_b32 s64, s65, 1")
        a(f"s_add_u32 s64, s64, 4")
        a(f"s_lshl_b32 s64, s64, 10")
        a(f"s_and_b32 s65, s65, 1")
        a(f"s_lshl_b32 s65, s65, 3")
        a(f"s_add_u32 s64, s64, s65")
    a.label(l2)
    a(f"s_add_u32 s63, s63, s64")
    a(f"v_add_u32 v9, s63, v7")
    a(f"v_add_u32 v10, {6*1024}, v9")
    def big(ex):
        a(f"s_mul_i32 s74, s{S_U}, {32*12*1024}")
        gemm_stream(a, 20, [W0, W1], [([ACC+8*tt, ACC+8*tt+4], tt*20480) for tt in range(2)], FR, NF, 8, not isV, ex)
        a("s_nop 7")
        if isV:
            cvt4(a, O_, ACC, ACC+8); cvt4(a, O_+4, ACC+4, ACC+12)
            st_cross(a, [f"buffer_store_dwordx4 v[{O_}:{O_+3}], v9, {WSR}, s74 offen",
                         f"buffer_store_dwordx4 v[{O_+4}:{O_+7}], v9, {WSR}, s74 offen offset:1024"])
        else:
            cvt4(a, O_, ACC, ACC+4); cvt4(a, O_+4, ACC+8, ACC+12)
            st_cross(a, [f"buffer_store_dwordx4 v[{O_}:{O_+3}], v9, {WSR}, s74 offen",
                         f"buffer_store_dwordx4 v[{O_+4}:{O_+7}], v10, {WSR}, s74 offen"])
    def small(ex):
        a(f"s_mul_i32 s74, s{S_U}, {32*12*1024}")
        gemm_stream(a, 20, [W0], [([ACC+4*tt], tt*20480) for tt in range(2)], FR, NF, 8, not isV, ex)
        a("s_nop 7")
        cvt4(a, O_, ACC, ACC+4)
        if isV:
            st_cross(a, [f"buffer_store_dwordx4 v[{O_}:{O_+3}], v9, {WSR}, s74 offen"])
        else:
            st_cross(a, [f"buffer_store_dwordx2 v[{O_}:{O_+1}], v9, {WSR}, s74 offen",
                         f"buffer_store_dwordx2 v[{O_+2}:{O_+3}], v10, {WSR}, s74 offen"])
    pre = None
    if cfg.get("lead"):
        a(f"s_lshl_b32 s63, s60, 3")
        a(f"s_add_u32 s63, s63, s{S_GRP}")
        a(f"s_lshl_b32 s63, s63, 7")
        a(f"s_add_u32 s63, s63, {FLX + 160*128}")
        a(f"v_mov_b32 v11, s63")
        a(f"s_mov_b32 s77, 0")
        def pre():
            a(f"s_max_u32 s75, s{S_U}, {cfg['lead']}")
            a(f"s_sub_u32 s75, s75, {cfg['lead']}")
            flag_wait_w0(a, 11, 75, 77, 2, sleep=8, ahead=0)
    xn_loop(a, cfg, big, 2, small, 1 if isV else 2, None, 1, 4, done, pre_bar=pre)

def gen_f1_pre(a, cfg):
    W0, W1 = 96, 176
    a(f"s_lshl_b32 s62, s60, 8")
    for (ptr, wb) in ((S_WG, W0), (S_WU, W1)):
        tr_base(a, 10, 256, 8, 8, 11)
        a(f"s_lshl_b32 s63, s{S_WAVE}, 5")
        a(f"v_add_u32 v10, s63, v10")
        rd = make_reader(a, 10, 11, [(lambda l: None, [(wb, 0)])], 256, 160, 4)
        stage_weights(a, ptr, 640*1536*2, 3072, 62, 640, 16, 160, 4, rd)

def gen_f1_main(a, cfg, done):
    W0, W1 = 96, 176
    O_ = 64
    a(f"v_lshlrev_b32 v7, 4, v1")
    a(f"s_lshl_b32 s63, s60, 2")
    a(f"s_lshr_b32 s64, s{S_WAVE}, 1")
    a(f"s_add_u32 s63, s63, s64")
    a(f"s_lshl_b32 s63, s63, 10")
    a(f"s_and_b32 s64, s{S_WAVE}, 1")
    a(f"s_lshl_b32 s64, s64, 3")
    a(f"s_add_u32 s63, s63, s64")
    a(f"s_add_u32 s63, s63, {HF}")
    a(f"v_add_u32 v9, s63, v7")
    a(f"v_add_u32 v10, {48*1024}, v9")
    def body(ex):
        a(f"s_mul_i32 s74, s{S_U}, {96*1024}")
        gemm_stream(a, 20, [W0, W1], [([ACC+8*tt, ACC+8*tt+4], tt*20480) for tt in range(2)], FR, NF, 8, True, ex)
        a("s_nop 7")
        for k in range(16): round_bf16(a, ACC+k, ACC+k)
        for tt in range(2):
            for r in range(4): a(f"v_mul_f32 v{ACC+8*tt+r}, v{ACC+8*tt+r}, v{ACC+8*tt+4+r}")
        cvt4(a, O_, ACC, ACC+8)
        a(f"buffer_store_dwordx2 v[{O_}:{O_+1}], v9, {WSR}, s74 offen sc1")
        a(f"buffer_store_dwordx2 v[{O_+2}:{O_+3}], v10, {WSR}, s74 offen sc1")
    xn_loop(a, cfg, body, 2, None, 0, 9, NF1, 2*NF1, done)

def gen_f2_pre(a, cfg):
    a(f"s_lshl_b32 s62, s61, 8")
    tr_base(a, 10, 256, 4, 8, 11)
    a(f"s_lshl_b32 s63, s{S_WAVE}, 5")
    a(f"v_add_u32 v10, s63, v10")
    rd = make_reader(a, 10, 11, [(lambda l: None, [(64, 0)])], 256, 192, 16)
    stage_weights(a, S_WD, 1536*640*2, 1280, 62, 1536, 16, 192, 3, rd)

def gen_f2_main(a, cfg, done):
    a(f"v_lshlrev_b32 v7, 4, v1")
    a(f"v_lshlrev_b32 v9, 3, v1")
    a(f"s_lshl_b32 s63, s61, 3")
    a(f"s_add_u32 s63, s63, s{S_WAVE}")
    a(f"s_lshl_b32 s63, s63, 9")
    a(f"s_add_u32 s63, s63, {GB}")
    a(f"v_add_u32 v9, s63, v9")
    a(f"v_min_u32 v11, {12*NF1-1}, v1")
    a(f"v_lshlrev_b32 v11, 7, v11")
    a(f"v_add_u32 v11, {FL2}, v11")
    a(f"s_mov_b32 s77, 0")
    def need(stile):
        a(f"s_lshr_b32 s75, s{stile}, 1")
        a(f"s_add_u32 s75, s75, 1")
        if not cfg.get("nowait"): flag_wait_w0(a, 11, 75, 77, 12, sleep=4, ahead=0)
    a(f"s_lshl_b32 s{S_U}, s9, 1")
    a(f"s_mov_b32 s71, 0")
    a(f"s_mov_b32 s79, 0")
    need(S_U)
    a("s_barrier")
    a(f"s_mul_i32 s70, s{S_U}, {48*1024}")
    a(f"s_add_u32 s70, s70, {HF}")
    dma_frags(a, 6, 70, 71)
    top = a.newlabel("f2")
    a.label(top)
    a(f"s_and_b32 s63, s{S_U}, 1")
    a(f"s_mul_i32 s63, s63, {2*NF2-2}")
    a(f"s_add_u32 s72, s{S_U}, s63")
    a(f"s_add_u32 s72, s72, 1")
    a(f"s_min_u32 s80, s72, 127")
    a("s_waitcnt vmcnt(0)")
    need(80)
    a("s_barrier")
    a(f"s_lshr_b32 s78, s{S_U}, 1")
    flag_set(a, S_FLAG, 78, False, 2)
    a(f"s_cmp_ge_u32 s{S_U}, 128")
    a(f"s_cbranch_scc1 {done}")
    a(f"v_add_u32 v8, s79, v7")
    a(f"s_xor_b32 s79, s79, {48*1024}")
    a(f"s_lshl_b32 s63, s{S_WAVE}, 10")
    a(f"s_add_u32 s71, s79, s63")
    a(f"s_mul_i32 s70, s80, {48*1024}")
    a(f"s_add_u32 s70, s70, s63")
    a(f"s_add_u32 s70, s70, {HF}")
    xs = dma_stream(a, 70, 71)
    a(f"s_mul_i32 s74, s{S_U}, {40*512}")
    gemm_unit(a, 48, [64], [ACC], FR, NF, 8, 0, True, {1: xs, 5: xs, 9: xs, 13: xs, 17: xs, 21: xs})
    a("s_nop 7")
    for r in range(4):
        y, t = ACC+r, ACC+4+r
        round_bf16(a, y, y)
        a(f"v_mul_f32 v{t}, {f32hex(-math.log2(math.e))}, v{y}")
        a(f"v_exp_f32 v{t}, v{t}")
        a("s_nop 0")
        a(f"v_add_f32 v{t}, 1.0, v{t}")
        a(f"v_rcp_f32 v{t}, v{t}")
        a("s_nop 0")
        a(f"v_mul_f32 v{y}, v{y}, v{t}")
    a(f"v_cvt_pk_bf16_f32 v{ACC+8}, v{ACC}, v{ACC+1}")
    a(f"v_cvt_pk_bf16_f32 v{ACC+9}, v{ACC+2}, v{ACC+3}")
    a(f"buffer_store_dwordx2 v[{ACC+8}:{ACC+9}], v9, {WSR}, s74 offen sc1")
    a(f"s_mov_b32 s{S_U}, s72")
    a(f"s_branch {top}")

LQ_Q = 81920
LQ_K = LQ_Q + 24576

def gen_q_pre(a, cfg):
    a(f"s_sub_u32 s60, s{S_IDX}, 20")
    a(f"s_lshl_b32 s61, s{S_GRP}, 2")
    a(f"s_add_u32 s61, s61, s60")
    proj_weights(a, S_WQ, 1, 61)

def qstamp(a, cfg, k, at=30):
    if not cfg.get("qts"): return
    l = a.newlabel("qt")
    a(f"s_cmp_eq_u32 s{S_U}, {at}")
    a(f"s_cbranch_scc0 {l}")
    a(f"s_memtime s[100:101]")
    a("s_waitcnt lgkmcnt(0)")
    a(f"s_mov_b32 s{90+k}, s100")
    a.label(l)

def gen_q_main(a, cfg):
    W0, W1 = 96, 176
    O_ = 64
    wait = not cfg.get("nowait")
    a(f"v_lshlrev_b32 v7, 4, v1")
    l1 = a.newlabel("q"); l2 = a.newlabel("q")
    a(f"s_cmp_lt_u32 s{S_WAVE}, 4")
    a(f"s_cbranch_scc0 {l1}")
    a(f"s_lshl_b32 s64, s{S_WAVE}, 10")
    a(f"s_branch {l2}")
    a.label(l1)
    a(f"s_sub_u32 s65, s{S_WAVE}, 4")
    a(f"s_lshr_b32 s64, s65, 1")
    a(f"s_add_u32 s64, s64, 4")
    a(f"s_lshl_b32 s64, s64, 10")
    a(f"s_and_b32 s65, s65, 1")
    a(f"s_lshl_b32 s65, s65, 3")
    a(f"s_add_u32 s64, s64, s65")
    a.label(l2)
    a(f"s_add_u32 s64, s64, {LQ_Q}")
    a(f"v_add_u32 v9, s64, v7")
    kv_flag_addr(a, 10)
    a(f"s_lshl_b32 s63, s61, 7")
    a(f"s_add_u32 s63, s63, {KMF}")
    a(f"v_min_u32 v11, 2, v1")
    a(f"v_lshlrev_b32 v11, 2, v11")
    a(f"v_add_u32 v11, s63, v11")
    a(f"s_mov_b32 s77, 0")
    a(f"s_mov_b32 s78, {100 if cfg.get('nowait') else 0}")
    a(f"s_and_b32 s79, s{S_WAVE}, 1")
    a(f"s_bfe_u32 s80, s{S_WAVE}, 0x10001")
    a(f"v_lshrrev_b32 v12, 4, v1")
    a(f"v_lshlrev_b32 v12, 2, v12")
    a(f"v_and_b32 v13, 15, v1")
    for r in range(4):
        a(f"v_add_u32 v14, {r}, v12")
        a(f"v_cmp_gt_u32 s[{82+2*r}:{83+2*r}], v14, v13")
    a(f"s_mul_i32 s63, s79, 6144")
    a(f"s_add_u32 s63, s63, {LQ_Q}")
    a(f"v_add_u32 v12, s63, v7")
    a(f"s_mul_i32 s63, s80, 6144")
    a(f"s_add_u32 s63, s63, {LQ_K + 12288}")
    a(f"v_add_u32 v13, s63, v7")
    a(f"s_mul_i32 s63, s61, 3072")
    a(f"s_mul_i32 s64, s80, 1536")
    a(f"s_add_u32 s63, s63, s64")
    a(f"s_add_u32 s63, s63, {VM2}")
    a(f"v_lshlrev_b32 v14, 2, v1")
    a(f"v_add_u32 v14, s63, v14")
    a(f"s_lshl_b32 s63, s79, 5")
    a(f"s_add_u32 s63, s63, s61")
    a(f"s_mul_i32 s63, s63, 6144")
    a(f"s_mul_i32 s64, s80, 3072")
    a(f"s_add_u32 s63, s63, s64")
    a(f"s_add_u32 s63, s63, {OF}")
    a(f"v_add_u32 v15, s63, v7")
    a(f"v_add_u32 v6, {LQ_K}, v7")
    a(f"s_mul_i32 s63, s61, 6144")
    a(f"s_add_u32 s63, s63, {KM2}")
    a(f"v_add_u32 v5, s63, v7")
    a(f"v_mov_b32 v4, {OOB}")
    a(f"v_and_b32 v2, 2, v1")
    a(f"v_cmp_eq_u32 vcc, 0, v2")
    a("s_nop 1")
    a(f"v_cndmask_b32 v5, v4, v5, vcc")
    a(f"v_add_u32 v4, 4096, v5")
    a(f"s_mov_b32 s81, {f32hex(C_EXP)}")
    lpr = a.newlabel("qp")
    a(f"s_cmp_lt_u32 s{S_WAVE}, 4")
    a(f"s_cbranch_scc1 {lpr}")
    a(f"s_setprio {cfg.get('qprio', 2)}")
    a.label(lpr)
    a(f"s_mov_b32 s{S_U}, 0")
    a(f"s_mov_b32 s70, {XN}")
    a(f"s_mov_b32 s71, 0")
    dma_frags(a, 5, 70, 71)
    top = a.newlabel("ql"); sm = a.newlabel("qs"); jn = a.newlabel("qj"); att = a.newlabel("qa"); fin = a.newlabel("qf")
    a.label(top)
    if wait:
        a(f"s_add_u32 s75, s{S_U}, 1")
        a(f"s_min_u32 s75, s75, 64")
        flag_wait_w0(a, 10, 75, 77, 2)
    a("s_waitcnt vmcnt(0) lgkmcnt(0)")
    a("s_barrier")
    qstamp(a, cfg, 0); qstamp(a, cfg, 9, 31)
    a(f"s_max_u32 s75, s{S_U}, 1")
    a(f"s_sub_u32 s75, s75, 1")
    flag_set(a, S_FLAG, 75, True, 2)
    a(f"s_cmp_eq_u32 s{S_U}, 65")
    a(f"s_cbranch_scc1 {fin}")
    a(f"s_and_b32 s72, s{S_U}, 1")
    a(f"s_mov_b32 s69, 0")
    a(f"s_cmp_eq_u32 s{S_U}, 64")
    lnp = a.newlabel("qnp")
    a(f"s_cbranch_scc1 {lnp}")
    a(f"s_add_u32 s74, s{S_U}, 1")
    a(f"s_min_u32 s74, s74, 63")
    a(f"s_mul_i32 s70, s74, {40*1024}")
    a(f"s_lshl_b32 s63, s{S_WAVE}, 10")
    a(f"s_add_u32 s70, s70, s63")
    if XN: a(f"s_add_u32 s70, s70, {XN}")
    a(f"s_mul_i32 s64, s72, {40*1024}")
    a(f"v_add_u32 v8, s64, v7")
    a(f"s_xor_b32 s71, s64, {40*1024}")
    a(f"s_add_u32 s71, s71, s63")
    a(f"s_mul_i32 s64, s72, 12288")
    a(f"v_add_u32 v3, s64, v9")
    a(f"s_cmp_lt_u32 s{S_WAVE}, 4")
    a(f"s_cbranch_scc0 {sm}")
    a(f"s_lshl_b32 s74, s{S_U}, 5")
    a(f"s_add_u32 s74, s74, s61")
    a(f"s_mul_i32 s74, s74, 12288")
    a(f"s_add_u32 s74, s74, s63")
    a(f"s_add_u32 s64, s74, {VF}")
    a(f"s_add_u32 s74, s74, {KF}")
    a(f"s_mul_i32 s65, s72, 24576")
    a(f"s_add_u32 s65, s65, s63")
    a(f"s_add_u32 s65, s65, {LQ_K}")
    xs = dma_stream(a, 70, 71, 4096); ks_ = dma_stream(a, 74, 65, 4096); vs_ = dma_stream(a, 64, 65, 4096)
    ex = {cfg.get("qsp", 1)*k: f for k, f in enumerate([ks_]*3 + [vs_]*3 + [xs]*10)}
    if cfg.get("qsp") == 0:
        for f in [ks_]*3 + [vs_]*3 + [xs]*10: f()
        ex = None
    gemm_stream(a, 20, [W0, W1], [([ACC+8*tt, ACC+8*tt+4], tt*20480) for tt in range(2)], FR, NF, 8, True, ex)
    a("s_nop 7")
    cvt4(a, O_, ACC, ACC+4); cvt4(a, O_+4, ACC+8, ACC+12)
    a(f"ds_write_b128 v3, v[{O_}:{O_+3}]")
    a(f"ds_write_b128 v3, v[{O_+4}:{O_+7}] offset:6144")
    qstamp(a, cfg, 1)
    a(f"s_branch {jn}")
    a.label(sm)
    KMR, VMR = 212, 200
    def km_loads():
        a(f"s_sub_u32 s75, s{S_U}, 1")
        a(f"s_mul_i32 s68, s75, {32*6144}")
        for ks in range(6):
            a(f"buffer_load_dwordx4 v[{KMR+4*ks}:{KMR+4*ks+3}], v{5 if ks < 4 else 4}, {WSR}, s68 offen offset:{(ks%4)*1024} sc1")
        a(f"s_lshr_b32 s75, s68, 1")
        for t in range(6):
            a(f"buffer_load_dword v{VMR+2*t}, v14, {WSR}, s75 offen offset:{t*256} sc1")
    lne = a.newlabel("qne")
    a(f"s_cmp_eq_u32 s{S_U}, 0")
    a(f"s_cbranch_scc1 {lne}")
    a(f"s_cmp_ge_u32 s78, s{S_U}")
    a(f"s_cbranch_scc0 {lne}")
    km_loads()
    a(f"s_mov_b32 s69, 1")
    a.label(lne)
    gemm_stream(a, 20, [W0], [([ACC+4*tt], tt*20480) for tt in range(2)], FR, NF, 8, True)
    a("s_nop 7")
    cvt4(a, O_, ACC, ACC+4)
    a(f"ds_write_b64 v3, v[{O_}:{O_+1}]")
    a(f"ds_write_b64 v3, v[{O_+2}:{O_+3}] offset:6144")
    qstamp(a, cfg, 1)
    a.label(lnp)
    a(f"s_cmp_lt_u32 s{S_WAVE}, 4")
    a(f"s_cbranch_scc1 {jn}")
    a(f"s_cmp_eq_u32 s{S_U}, 0")
    a(f"s_cbranch_scc1 {jn}")
    QF = 64
    KFR = 16
    S0, S1, SM = 48, 52, 56
    mx, tmp = 60, 61
    PB, PM = 88, 92
    ONE = 40
    VT = 176
    D = 212
    Z = 236
    OUT = 240
    AQ_, AK_, AV_ = 44, 45, 46
    a(f"s_xor_b32 s72, s72, 1")
    a(f"s_mul_i32 s64, s72, 12288")
    a(f"v_add_u32 v{AQ_}, s64, v12")
    a(f"s_lshl_b32 s64, s64, 1")
    a(f"v_add_u32 v{AK_}, s64, v6")
    a(f"v_add_u32 v{AV_}, s64, v13")
    for ks in range(6): a(f"ds_read_b128 v[{QF+4*ks}:{QF+4*ks+3}], v{AQ_} offset:{ks*1024}")
    def smma(acc, ks):
        c = "0" if ks == 0 else f"v[{acc}:{acc+3}]"
        a(f"v_mfma_f32_16x16x32_bf16 v[{acc}:{acc+3}], v[{KFR+4*ks}:{KFR+4*ks+3}], v[{QF+4*ks}:{QF+4*ks+3}], {c}")
    def stile(acc, off):
        for ks in range(6): a(f"ds_read_b128 v[{KFR+4*ks}:{KFR+4*ks+3}], v{AK_} offset:{off+ks*1024}")
        for ks in range(6):
            a(f"s_waitcnt lgkmcnt({5-ks})")
            smma(acc, ks)
    stile(S0, 0)
    lq0 = a.newlabel("q0"); lq1 = a.newlabel("q1")
    a(f"v_mov_b32 v{tmp}, 0xf149f2ca")
    a(f"s_cmp_eq_u32 s79, 0")
    a(f"s_cbranch_scc1 {lq0}")
    stile(S1, 6144)
    a("s_nop 7")
    for r in range(4): a(f"v_cndmask_b32 v{S1+r}, v{S1+r}, v{tmp}, s[{82+2*r}:{83+2*r}]")
    a(f"s_branch {lq1}")
    a.label(lq0)
    a("s_nop 7")
    for r in range(4): a(f"v_cndmask_b32 v{S0+r}, v{S0+r}, v{tmp}, s[{82+2*r}:{83+2*r}]")
    for r in range(4): a(f"v_mov_b32 v{S1+r}, v{tmp}")
    a.label(lq1)
    for t in range(6): a(f"ds_read_b128 v[{VT+4*t}:{VT+4*t+3}], v{AV_} offset:{t*1024}")
    for t in range(6): a(f"v_mov_b32 v{VMR+2*t+1}, 0")
    for k in range(4): a(f"v_mov_b32 v{ONE+k}, 0x3f803f80")
    a(f"v_mov_b32 v{PM+1}, 0")
    a(f"v_max3_f32 v{mx}, v{S0}, v{S0+1}, v{S0+2}")
    a(f"v_max3_f32 v{mx}, v{mx}, v{S0+3}, v{S1}")
    a(f"v_max3_f32 v{mx}, v{mx}, v{S1+1}, v{S1+2}")
    a(f"v_max_f32 v{mx}, v{mx}, v{S1+3}")
    qstamp(a, cfg, 2)
    lhv = a.newlabel("qhv")
    a(f"s_cmp_eq_u32 s69, 1")
    a(f"s_cbranch_scc1 {lhv}")
    if wait: flag_wait(a, 11, S_U, 78, 2, sleep=1, ahead="min3")
    km_loads()
    a.label(lhv)
    a(f"s_waitcnt vmcnt(6)")
    for ks in range(6):
        c = "0" if ks == 0 else f"v[{SM}:{SM+3}]"
        a(f"v_mfma_f32_16x16x32_bf16 v[{SM}:{SM+3}], v[{KMR+4*ks}:{KMR+4*ks+3}], v[{QF+4*ks}:{QF+4*ks+3}], {c}")
    a(f"s_lshl_b32 s74, s68, 1")
    qstamp(a, cfg, 3)
    a("s_nop 6")
    a(f"v_max3_f32 v{mx}, v{mx}, v{SM}, v{SM+1}")
    for op in ("v_permlane16_swap_b32", "v_permlane32_swap_b32"):
        a(f"v_mov_b32 v{tmp}, v{mx}")
        a("s_nop 1")
        a(f"{op} v{mx}, v{tmp}")
        a(f"v_max_f32 v{mx}, v{mx}, v{tmp}")
    vals = [SM, SM+1, S0, S0+1, S0+2, S0+3, S1, S1+1, S1+2, S1+3]
    a(f"v_mul_f32 v{mx}, s81, v{mx}")
    for v in vals: a(f"v_fma_f32 v{v}, v{v}, s81, -v{mx}")
    for v in vals: a(f"v_exp_f32 v{v}, v{v}")
    a(f"v_cvt_pk_bf16_f32 v{PM}, v{SM}, v{SM+1}")
    cvt4(a, PB, S0, S1)
    qstamp(a, cfg, 4)
    a("s_waitcnt vmcnt(0) lgkmcnt(0)")
    qstamp(a, cfg, 5)
    a(f"v_mfma_f32_16x16x16_bf16 v[{Z}:{Z+3}], v[{ONE}:{ONE+1}], v[{PM}:{PM+1}], 0")
    for t in range(6):
        a(f"v_mfma_f32_16x16x16_bf16 v[{D+4*t}:{D+4*t+3}], v[{VMR+2*t}:{VMR+2*t+1}], v[{PM}:{PM+1}], 0")
    a(f"v_mfma_f32_16x16x32_bf16 v[{Z}:{Z+3}], v[{ONE}:{ONE+3}], v[{PB}:{PB+3}], v[{Z}:{Z+3}]")
    for t in range(6):
        a(f"v_mfma_f32_16x16x32_bf16 v[{D+4*t}:{D+4*t+3}], v[{VT+4*t}:{VT+4*t+3}], v[{PB}:{PB+3}], v[{D+4*t}:{D+4*t+3}]")
    a("s_nop 1")
    a(f"v_rcp_f32 v{tmp}, v{Z}")
    a("s_nop 0")
    for k in range(24): a(f"v_mul_f32 v{D+k}, v{D+k}, v{tmp}")
    for k in range(3): cvt4(a, OUT+4*k, D+8*k, D+8*k+4)
    st_intra(a, [f"buffer_store_dwordx4 v[{OUT+4*k}:{OUT+4*k+3}], v15, {WSR}, s74 offen offset:{k*1024}" for k in range(3)])
    qstamp(a, cfg, 6)
    a.label(jn)
    a(f"s_add_u32 s{S_U}, s{S_U}, 1")
    a(f"s_branch {top}")
    a.label(fin)
    if cfg.get("qts"):
        import chain
        chain.ts_dump(a, cfg, 10)
    a("s_endpgm")

def gen_o_pre(a, cfg):
    a(f"s_sub_u32 s60, s{S_IDX}, 24")
    a(f"s_mul_i32 s62, s{S_GRP}, {768*1280}")
    a(f"s_mul_i32 s63, s60, 320")
    a(f"s_add_u32 s62, s62, s63")
    tr_base(a, 10, 320, 4, 8, 11)
    a(f"s_lshl_b32 s63, s{S_WAVE}, 1")
    a(f"s_add_u32 s64, s{S_WAVE}, 2")
    a(f"s_min_u32 s9, s63, s64")
    a(f"s_lshl_b32 s63, s9, 5")
    a(f"v_add_u32 v10, s63, v10")
    def two(l): a(f"s_cmp_lt_u32 s{S_WAVE}, 2"); a(f"s_cbranch_scc0 {l}")
    def one(l): a(f"s_cmp_lt_u32 s{S_WAVE}, 2"); a(f"s_cbranch_scc1 {l}")
    rd = make_reader(a, 10, 11, [(two, [(64, 0), (160, 32)]), (one, [(64, 0)])], 320, 128, 16)
    stage_weights(a, S_WO, 6144*640*2, 1280, 62, 768, 20, 128, 4, rd, vb=2)

LO_B = 98304
def gen_o_main(a, cfg):
    wait = not cfg.get("nowait")
    a(f"v_lshlrev_b32 v7, 4, v1")
    a(f"s_mul_i32 s63, s{S_GRP}, {128*40}")
    a(f"s_mul_i32 s64, s60, 10")
    a(f"s_add_u32 s63, s63, s64")
    a(f"s_add_u32 s63, s63, s9")
    a(f"s_lshl_b32 s63, s63, 10")
    a(f"s_add_u32 s63, s63, {PO}")
    a(f"v_add_u32 v9, s63, v7")
    a(f"s_lshl_b32 s63, s{S_GRP}, 7")
    a(f"s_add_u32 s63, s63, {FLQ}")
    a(f"v_min_u32 v11, 3, v1")
    a(f"v_lshlrev_b32 v11, 2, v11")
    a(f"v_add_u32 v11, s63, v11")
    a(f"v_mov_b32 v10, {LO_B}")
    a(f"s_mov_b32 s77, 0")
    a(f"s_mov_b32 s{S_U}, 0")
    a(f"s_mov_b32 s78, 0")
    def src_setup(sseg):
        a(f"s_lshl_b32 s70, s{sseg}, 4")
        a(f"s_add_u32 s70, s70, s{S_GRP}")
        a(f"s_mul_i32 s70, s70, {4*6144}")
        a(f"s_lshl_b32 s63, s{S_WAVE}, 10")
        a(f"s_add_u32 s70, s70, s63")
        a(f"s_add_u32 s70, s70, {OF}")
        a(f"s_add_u32 s80, s70, {32*6144}")
        a(f"s_and_b32 s71, s{sseg}, 1")
        a(f"s_mul_i32 s71, s71, 49152")
        a(f"s_add_u32 s71, s71, s63")
        a(f"s_add_u32 s81, s71, 24576")
    d0 = dma_stream(a, 70, 71); d1 = dma_stream(a, 80, 81)
    one = a.newlabel("o1")
    a(f"s_cmp_lt_u32 s{S_WAVE}, 2")
    a(f"s_cbranch_scc0 {one}")
    for nt in (2, 1):
        if nt == 1: a.label(one)
        top = a.newlabel("o"); have = a.newlabel("oh"); nopf = a.newlabel("on"); jn = a.newlabel("oj"); go = a.newlabel("og")
        a.label(top)
        a(f"s_cmp_gt_u32 s78, s{S_U}")
        a(f"s_cbranch_scc1 {have}")
        a("s_waitcnt vmcnt(0)")
        a("s_barrier")
        flag_set(a, S_FLAG, S_U, False, 2)
        a(f"s_add_u32 s75, s{S_U}, 1")
        if wait: flag_wait_w0(a, 11, 75, 77, 12, sleep=1, ahead=0)
        a("s_barrier")
        src_setup(S_U)
        for k in range(3): d0()
        for k in range(3): d1()
        a(f"s_add_u32 s78, s{S_U}, 1")
        a("s_waitcnt vmcnt(3)")
        a(f"s_branch {go}")
        a.label(have)
        a(f"s_waitcnt vmcnt({nt})")
        a.label(go)
        a("s_barrier")
        a(f"s_and_b32 s63, s{S_U}, 1")
        a(f"s_mul_i32 s63, s63, 49152")
        a(f"v_add_u32 v8, s63, v7")
        a(f"s_mul_i32 s74, s{S_U}, {80*1024}")
        if nt == 1:
            lp = a.newlabel("op")
            a(f"s_cmp_eq_u32 s{S_WAVE}, 7")
            a(f"s_cbranch_scc0 {lp}")
            a(f"buffer_load_dword v12, v11, {WSR}, 0 offen sc1")
            a.label(lp)
        gemm_unit(a, 24, [64, 160][:nt], [ACC, ACC+4][:nt], FR, NF, 8, 0, True)
        if nt == 1:
            lp = a.newlabel("op")
            a(f"s_cmp_eq_u32 s{S_WAVE}, 7")
            a(f"s_cbranch_scc0 {lp}")
            a("s_waitcnt vmcnt(0)")
            a(f"s_add_u32 s75, s{S_U}, 2")
            a(f"v_cmp_gt_u32 vcc, s75, v12")
            a(f"s_cmp_eq_u64 vcc, 0")
            a(f"s_cselect_b32 s63, 1, {0 if wait else 1}")
            a(f"v_mov_b32 v13, s63")
            a(f"ds_write_b32 v10, v13")
            a.label(lp)
        a("s_nop 7")
        for t in range(nt):
            a(f"buffer_store_dwordx4 v[{ACC+4*t}:{ACC+4*t+3}], v9, {WSR}, s74 offen offset:{1024*t} sc1")
        a(f"s_add_u32 s74, s74, {40*1024}")
        a(f"s_waitcnt vmcnt({nt}) lgkmcnt(0)")
        a("s_barrier")
        flag_set(a, S_FLAG, S_U, False, 2)
        a(f"ds_read_b32 v13, v10")
        a(f"s_add_u32 s75, s{S_U}, 1")
        a("s_waitcnt lgkmcnt(0)")
        a(f"v_readfirstlane_b32 s63, v13")
        a(f"s_cmp_lt_u32 s75, 64")
        a(f"s_cselect_b32 s63, s63, 0")
        a(f"s_cmp_eq_u32 s63, 0")
        a(f"s_cbranch_scc1 {nopf}")
        src_setup(75)
        a(f"s_add_u32 s78, s75, 1")
        gemm_unit(a, 24, [64, 160][:nt], [ACC+8, ACC+12][:nt], FR, NF, 8, 24576, True, {1: d0, 3: d0, 5: d0, 7: d1, 9: d1, 11: d1})
        a(f"s_branch {jn}")
        a.label(nopf)
        gemm_unit(a, 24, [64, 160][:nt], [ACC+8, ACC+12][:nt], FR, NF, 8, 24576, True)
        a.label(jn)
        a("s_nop 7")
        for t in range(nt):
            a(f"buffer_store_dwordx4 v[{ACC+8+4*t}:{ACC+8+4*t+3}], v9, {WSR}, s74 offen offset:{1024*t} sc1")
        a(f"s_add_u32 s{S_U}, s{S_U}, 1")
        a(f"s_cmp_lt_u32 s{S_U}, 64")
        a(f"s_cbranch_scc1 {top}")
        a("s_waitcnt vmcnt(0)")
        a("s_barrier")
        flag_set(a, S_FLAG, S_U, False, 2)
        a("s_endpgm")

def gen_e_main(a, cfg):
    srd(a, SRD_M, S_X, 2048*640*2)
    srd(a, SRD_W, S_OUT, 2048*640*2)
    MR_ = f"s[{SRD_M}:{SRD_M+3}]"
    a(f"s_lshl_b32 s63, s60, 3")
    a(f"s_add_u32 s63, s63, s{S_WAVE}")
    a(f"s_lshl_b32 s64, s63, 9")
    a(f"v_lshlrev_b32 v9, 3, v1")
    a(f"v_add_u32 v9, s64, v9")
    a(f"v_lshlrev_b32 v8, 1, v9")
    a(f"v_add_u32 v8, {PO}, v8")
    a(f"v_add_u32 v9, {GB}, v9")
    a(f"s_cmp_ge_u32 s63, 40")
    a(f"s_cselect_b32 s64, {16*1280 - 40*32}, 0")
    a(f"s_lshl_b32 s63, s63, 5")
    a(f"s_add_u32 s63, s63, s64")
    a(f"v_and_b32 v7, 15, v1")
    a(f"v_mul_u32_u24 v7, 1280, v7")
    a(f"v_lshrrev_b32 v10, 4, v1")
    a(f"v_lshlrev_b32 v10, 3, v10")
    a(f"v_add3_u32 v7, v7, v10, s63")
    a(f"v_min_u32 v11, {32 + 5*NF2 - 1}, v1")
    a(f"v_lshlrev_b32 v11, 7, v11")
    a(f"v_lshrrev_b32 v10, 5, v1")
    a(f"v_mul_u32_u24 v10, {(FL2 + (12*NF1-32)*128) - (FLX + 192*128)}, v10")
    a(f"v_add_u32 v11, v11, v10")
    a(f"v_add_u32 v11, {FLX + 192*128}, v11")
    a(f"s_mov_b32 s77, 0")
    a(f"s_mov_b32 s{S_U}, s9")
    top = a.newlabel("e")
    a.label(top)
    a(f"s_mul_i32 s74, s{S_U}, {32*1280}")
    a(f"buffer_load_dwordx2 v[48:49], v7, {MR_}, s74 offen")
    a(f"s_add_u32 s75, s{S_U}, 1")
    if not cfg.get("nowait"):
        flag_wait_w0(a, 11, 75, 77, 12, sleep=3, ahead=NE)
        a("s_barrier")
    a(f"buffer_load_dwordx2 v[50:51], v9, {WSR}, s74 offen sc1")
    a(f"s_lshl_b32 s70, s74, 1")
    for g in range(8):
        a(f"buffer_load_dwordx4 v[{16+4*g}:{19+4*g}], v8, {WSR}, s70 offen sc1")
        a(f"s_add_u32 s70, s70, {2048*2560}")
    a("s_waitcnt vmcnt(0)")
    for st in (4, 2, 1):
        for g in range(st):
            for r in range(4): a(f"v_add_f32 v{16+4*g+r}, v{16+4*g+r}, v{16+4*(g+st)+r}")
    for r in range(4):
        round_bf16(a, 16+r, 16+r)
        src = 50 + (r >> 1); xs = 48 + (r >> 1)
        if r & 1:
            a(f"v_and_b32 v{20+r}, 0xffff0000, v{src}"); a(f"v_and_b32 v{24+r}, 0xffff0000, v{xs}")
        else:
            a(f"v_lshlrev_b32 v{20+r}, 16, v{src}"); a(f"v_lshlrev_b32 v{24+r}, 16, v{xs}")
        a(f"v_mul_f32 v{16+r}, v{16+r}, v{20+r}")
        round_bf16(a, 16+r, 16+r)
        a(f"v_add_f32 v{16+r}, v{16+r}, v{24+r}")
    a(f"v_cvt_pk_bf16_f32 v52, v16, v17")
    a(f"v_cvt_pk_bf16_f32 v53, v18, v19")
    a(f"buffer_store_dwordx2 v[52:53], v7, {WR}, s74 offen")
    if TRACE:
        a(f"s_add_u32 s75, s{S_U}, 1")
        a(f"s_mov_b32 s2, 255")
        l = a.newlabel("et")
        a(f"s_cmp_eq_u32 s{S_WAVE}, 0")
        a(f"s_cbranch_scc0 {l}")
        a(f"v_mov_b32 v2, 0")
        trace(a, 75, 2)
        a.label(l)
    a(f"s_add_u32 s{S_U}, s{S_U}, {NE}")
    a(f"s_cmp_lt_u32 s{S_U}, 64")
    a(f"s_cbranch_scc1 {top}")
    a("s_endpgm")

def gen_relay_init(a, which):
    a(f"s_lshl_b32 s62, s{S_GRP}, 2")
    if which == "R":
        a(f"s_and_b32 s63, s{S_IDX}, 1")
        a(f"s_lshl_b32 s63, s63, 1")
        a(f"s_add_u32 s62, s62, s63")
        a(f"s_lshr_b32 s63, s{S_WAVE}, 2")
        a(f"s_add_u32 s62, s62, s63")
        a(f"s_and_b32 s61, s{S_WAVE}, 3")
        a(f"s_lshl_b32 s{S_FLAG}, s62, 7")
        a(f"s_lshl_b32 s63, s61, 2")
        a(f"s_add_u32 s{S_FLAG}, s{S_FLAG}, s63")
        a(f"s_add_u32 s{S_FLAG}, s{S_FLAG}, {KMF}")
    else:
        a(f"s_lshr_b32 s63, s{S_WAVE}, 1")
        a(f"s_add_u32 s62, s62, s63")
        a(f"s_and_b32 s61, s{S_WAVE}, 1")
        a(f"s_lshl_b32 s{S_FLAG}, s{S_GRP}, 7")
        a(f"s_lshl_b32 s63, s{S_WAVE}, 2")
        a(f"s_add_u32 s{S_FLAG}, s{S_FLAG}, s63")
        a(f"s_add_u32 s{S_FLAG}, s{S_FLAG}, {KVR}")
    a(f"v_mov_b32 v2, 0")
    a(f"buffer_store_dword v2, v2, {WSR}, s{S_FLAG} offen sc1")

def gen_relay_main(a, cfg):
    a(f"s_cmp_eq_u32 s61, 3")
    a(f"s_cbranch_scc1 L_exit")
    a(f"v_lshlrev_b32 v7, 4, v1")
    a(f"s_lshl_b32 s63, s{S_GRP}, 8")
    a(f"s_and_b32 s64, s62, 3")
    a(f"s_mul_i32 s64, s64, 3")
    a(f"s_add_u32 s64, s64, s61")
    a(f"s_lshl_b32 s64, s64, 2")
    a(f"s_add_u32 s63, s63, s64")
    a(f"s_add_u32 s63, s63, {FLI}")
    a(f"v_mov_b32 v11, s63")
    a(f"s_mul_i32 s63, s62, 6144")
    a(f"s_lshl_b32 s64, s61, 11")
    a(f"s_add_u32 s63, s63, s64")
    a(f"v_add_u32 v5, s63, v7")
    a(f"v_mov_b32 v4, {OOB}")
    a(f"v_and_b32 v2, 2, v1")
    a(f"v_cmp_eq_u32 vcc, 0, v2")
    a("s_nop 1")
    a(f"v_cndmask_b32 v5, v4, v5, vcc")
    a(f"s_lshr_b32 s63, s63, 1")
    a(f"v_add_u32 v6, s63, v7")
    a(f"v_mov_b32 v2, 0")
    a(f"s_mov_b32 s77, 0")
    a(f"s_mov_b32 s{S_U}, 0")
    top = a.newlabel("rl")
    a.label(top)
    a(f"s_add_u32 s75, s{S_U}, 1")
    a(f"s_mul_i32 s70, s{S_U}, {32*6144}")
    a(f"s_lshr_b32 s71, s70, 1")
    a(f"s_add_u32 s72, s70, {KM2}")
    a(f"s_add_u32 s74, s71, {VM2}")
    a(f"s_add_u32 s70, s70, {KM}")
    a(f"s_add_u32 s71, s71, {VM}")
    flag_wait(a, 11, 75, 77, 12, sleep=cfg.get("rsleep", 2), ahead=0, first=cfg.get("rfirst", 0))
    for ks in range(2):
        a(f"buffer_load_dwordx4 v[{16+4*ks}:{19+4*ks}], v5, {WSR}, s70 offen offset:{ks*1024} sc1")
    a(f"buffer_load_dwordx4 v[24:27], v6, {WSR}, s71 offen sc1")
    for ks in range(2):
        a(f"s_waitcnt vmcnt(2)")
        a(f"buffer_store_dwordx4 v[{16+4*ks}:{19+4*ks}], v5, {WSR}, s72 offen offset:{ks*1024} sc1")
    a(f"s_waitcnt vmcnt(2)")
    a(f"buffer_store_dwordx4 v[24:27], v6, {WSR}, s74 offen sc1")
    a(f"v_mov_b32 v3, s75")
    a("s_waitcnt vmcnt(0)")
    a(f"buffer_store_dword v3, v2, {WSR}, s{S_FLAG} offen sc1")
    if TRACE: trace(a, 75, 2)
    a(f"s_mov_b32 s{S_U}, s75")
    a(f"s_cmp_lt_u32 s{S_U}, 64")
    a(f"s_cbranch_scc1 {top}")
    a("s_endpgm")

def gen_pref_main(a, cfg):
    lead = cfg.get("plead", 6)
    a(f"s_and_b32 s60, s62, 3")
    a(f"s_lshl_b32 s63, s61, 2")
    a(f"s_add_u32 s63, s63, s60")
    a(f"s_lshl_b32 s63, s63, 3")
    a(f"s_add_u32 s63, s63, s{S_GRP}")
    a(f"s_lshl_b32 s63, s63, 7")
    a(f"s_add_u32 s63, s63, {FLX + 96*128}")
    a(f"v_mov_b32 v10, s63")
    a(f"s_lshl_b32 s63, s{S_GRP}, 8")
    a(f"s_mul_i32 s64, s60, 12")
    a(f"s_add_u32 s63, s63, s64")
    a(f"s_add_u32 s63, s63, {FLI}")
    a(f"v_mov_b32 v11, s63")
    a(f"v_lshlrev_b32 v7, 6, v1")
    a(f"s_mul_i32 s63, s62, 12288")
    a(f"s_mul_i32 s64, s61, {VF - KF}")
    a(f"s_add_u32 s63, s63, s64")
    a(f"s_add_u32 s63, s63, {KF}")
    a(f"v_add_u32 v7, s63, v7")
    a(f"v_mov_b32 v2, 0")
    a(f"s_mov_b32 s77, 0")
    a(f"s_mov_b32 s78, 0")
    a(f"s_mov_b32 s{S_U}, 0")
    top = a.newlabel("pl")
    a.label(top)
    a(f"s_max_u32 s75, s{S_U}, {lead}")
    a(f"s_sub_u32 s75, s75, {lead}")
    flag_wait(a, 11, 75, 78, 12, sleep=cfg.get('psleep', 8), ahead=0)
    a(f"s_add_u32 s75, s{S_U}, 1")
    flag_wait(a, 10, 75, 77, 12, sleep=1, ahead="exact")
    a(f"s_mul_i32 s70, s{S_U}, {32*12288}")
    for k in range(3):
        a(f"buffer_load_dword v{16+k}, v7, {WSR}, s70 offen sc1")
        a(f"s_add_u32 s70, s70, 4096")
    a(f"v_mov_b32 v3, s75")
    a("s_waitcnt vmcnt(0)")
    st_intra(a, [f"buffer_store_dword v3, v2, {WSR}, s{S_FLAG} offen"])
    if TRACE: trace(a, 75, 2)
    a(f"s_mov_b32 s{S_U}, s75")
    a(f"s_cmp_lt_u32 s{S_U}, 64")
    a(f"s_cbranch_scc1 {top}")
    a("s_endpgm")
```

```python
from common import *
import chain, bulk

HEADER = """; generated by gen/top.py
; @launch grid=(256,1,1) block=(512,1,1) lds=163840
.amdgcn_target "amdgcn-amd-amdhsa--gfx950"
.text
.globl {k}
.p2align 8
.type {k},@function
{k}:
"""
FOOTER = """
.section .rodata,"a"
.p2align 6
.amdhsa_kernel {k}
  .amdhsa_next_free_vgpr 256
  .amdhsa_next_free_sgpr 102
  .amdhsa_accum_offset 256
  .amdhsa_group_segment_fixed_size 0
  .amdhsa_kernarg_size 112
  .amdhsa_user_sgpr_count 2
  .amdhsa_user_sgpr_kernarg_segment_ptr 1
  .amdhsa_system_sgpr_workgroup_id_x 1
.end_amdhsa_kernel
"""
DSR = f"s[{SRD_D}:{SRD_D+3}]"

REMAP = True
FORCE_BAD = False
def entry(a):
    a("s_cmp_ge_u32 s2, 256")
    a("s_cbranch_scc1 L_exit")
    a("s_load_dwordx16 s[16:31], s[0:1], 0")
    a("s_load_dwordx8 s[32:39], s[0:1], 64")
    a("s_load_dwordx4 s[40:43], s[0:1], 96")
    a("v_lshrrev_b32 v2, 6, v0")
    a("v_and_b32 v1, 63, v0")
    a(f"v_readfirstlane_b32 s{S_WAVE}, v2")
    a(f"s_mov_b32 s{S_PHYS}, s2")
    a(f"s_mov_b32 s{S_RND}, 0")
    a("s_waitcnt lgkmcnt(0)")
    srd(a, SRD_WS, S_WSP, WS_BYTES)
    srd(a, SRD_D, S_DBG, 256)
    a.label("L_restart")
    a(f"s_lshl_b32 s60, s{S_WAVE}, 6")
    a("v_add_u32 v0, s60, v1")
    if REMAP:
        a("s_getreg_b32 s60, hwreg(HW_REG_XCC_ID)")
        a(f"s_cmp_eq_u32 s{S_RND}, 0")
        a(f"s_cselect_b32 s60, s60, s{S_PHYS}")
        a("s_and_b32 s60, s60, 7")
        a(f"s_lshr_b32 s61, s{S_PHYS}, 3")
        a("s_and_b32 s62, s60, 3")
        a("s_lshl_b32 s62, s62, 1")
        a("s_bfe_u32 s63, s61, 0x10002")
        a("s_and_b32 s64, s61, 3")
        a("s_lshr_b32 s65, s61, 3")
        a("s_cmp_lt_u32 s60, 4")
        a("s_cbranch_scc0 L_rm_bulk")
        a("s_cmp_lt_u32 s61, 24")
        a("s_cbranch_scc0 L_rm_q")
        a("s_cmp_ge_u32 s61, 12")
        a("s_cselect_b32 s63, 1, 0")
        a("s_mul_i32 s64, s63, 12")
        a(f"s_sub_u32 s{S_IDX}, s61, s64")
        a("s_branch L_rm_done")
        a.label("L_rm_q")
        a(f"s_add_u32 s{S_IDX}, s64, 28")
        a("s_branch L_rm_done")
        a.label("L_rm_bulk")
        a("s_lshl_b32 s66, s65, 2")
        a("s_add_u32 s66, s66, 12")
        a(f"s_add_u32 s{S_IDX}, s66, s64")
        a.label("L_rm_done")
        a(f"s_add_u32 s{S_GRP}, s62, s63")
        a(f"s_lshl_b32 s2, s{S_IDX}, 3")
        a(f"s_add_u32 s2, s2, s{S_GRP}")
    else:
        a(f"s_and_b32 s{S_GRP}, s2, 7")
        a(f"s_lshr_b32 s{S_IDX}, s2, 3")

VA = 252

def arrive_issue(a, vb):
    l = a.newlabel("arr")
    a(f"s_cmp_eq_u32 s{S_WAVE}, 0")
    a(f"s_cbranch_scc0 {l}")
    a("s_getreg_b32 s12, hwreg(HW_REG_XCC_ID)")
    a("s_and_b32 s12, s12, 15")
    a("s_cmp_gt_u32 s12, 7")
    a(f"s_cselect_b32 s13, s{S_PHYS}, 0")
    a("s_lshr_b32 s13, s13, 3")
    a("s_add_u32 s12, s12, s13")
    a(f"s_sub_u32 s12, s12, s{S_PHYS}")
    a("s_and_b32 s12, s12, 7")
    a("s_mul_i32 s13, s12, s12")
    a("s_lshl_b32 s12, s12, 9")
    a("s_or_b32 s12, s12, 1")
    a(f"v_mov_b32 v{vb}, s12")
    a(f"v_mov_b32 v{vb+1}, s13")
    a(f"v_mov_b32 v{vb+2}, {OOB}")
    a("v_cmp_eq_u32 vcc, 0, v1")
    a("s_nop 1")
    a(f"v_cndmask_b32 v{vb+2}, v{vb+2}, v1, vcc")
    a(f"buffer_atomic_add_x2 v[{vb}:{vb+1}], v{vb+2}, {DSR}, s{S_RND} offen sc1")
    bulk.trace_pt(a, 108, 16)
    a.label(l)

def master(a):
    l = a.newlabel("ms"); d = a.newlabel("msd"); o = a.newlabel("mso")
    a(f"s_cmp_eq_u32 s{S_PHYS}, 255")
    a(f"s_cbranch_scc0 {o}")
    a(f"s_cmp_eq_u32 s{S_WAVE}, 0")
    a(f"s_cbranch_scc0 {o}")
    a(f"v_mov_b32 v2, 0")
    a(f"s_mov_b32 s76, 1000000")
    a.label(l)
    a(f"buffer_load_dwordx2 v[4:5], v2, {DSR}, s{S_RND} offen sc1")
    a("s_sub_u32 s76, s76, 1")
    a(f"s_cbranch_scc1 {d}")
    a("s_waitcnt vmcnt(0)")
    a(f"v_readfirstlane_b32 s63, v4")
    a(f"v_readfirstlane_b32 s64, v5")
    a("s_and_b32 s65, s63, 511")
    a("s_cmp_eq_u32 s65, 256")
    a(f"s_cbranch_scc1 {d}")
    a("s_sleep 4")
    a(f"s_branch {l}")
    a.label(d)
    a("s_lshr_b32 s63, s63, 9")
    a("s_mul_i32 s63, s63, s63")
    a("s_lshl_b32 s64, s64, 8")
    a("s_cmp_eq_u32 s63, s64")
    a("s_cselect_b32 s63, 1, 2")
    a(f"v_mov_b32 v4, s63")
    if FORCE_BAD: a("v_mov_b32 v4, 2")
    a(f"buffer_store_dword v4, v2, {DSR}, s{S_RND} offen offset:128 sc1")
    bulk.trace_pt(a, 107, 16)
    a.label(o)

def wait_go(a, vt=8, sleep=8, can_master=False):
    l = a.newlabel("wa"); d = a.newlabel("wad"); o = a.newlabel("wao")
    if can_master: master(a)
    a(f"v_mov_b32 v{vt}, 0")
    a(f"s_cmp_eq_u32 s{S_WAVE}, 0")
    a(f"s_cbranch_scc0 {o}")
    a(f"s_mov_b32 s76, 1000000")
    a.label(l)
    a(f"buffer_load_dword v{vt+1}, v{vt}, {DSR}, s{S_RND} offen offset:128 sc1")
    a("s_sub_u32 s76, s76, 1")
    a(f"s_cbranch_scc1 {d}")
    a("s_waitcnt vmcnt(0)")
    a(f"v_readfirstlane_b32 s63, v{vt+1}")
    a("s_cmp_lg_u32 s63, 0")
    a(f"s_cbranch_scc1 {d}")
    a(f"s_sleep {sleep}")
    a(f"s_branch {l}")
    a.label(d)
    a("s_waitcnt vmcnt(0)")
    a(f"ds_write_b32 v{vt}, v{vt+1}")
    a("s_waitcnt lgkmcnt(0)")
    a.label(o)
    a("s_barrier")
    a(f"ds_read_b32 v{vt+1}, v{vt}")
    a("s_waitcnt lgkmcnt(0)")
    a(f"v_readfirstlane_b32 s63, v{vt+1}")
    a("s_cmp_lg_u32 s63, 1")
    a(f"s_cselect_b32 s{S_MODE}, 1, 0")
    a("s_waitcnt vmcnt(0)")
    a("s_barrier")
    k = a.newlabel("wak")
    a(f"s_cbranch_scc0 {k}")
    a(f"s_cmp_eq_u32 s{S_RND}, 0")
    a(f"s_mov_b32 s{S_RND}, 16")
    a(f"s_cbranch_scc1 L_restart")
    a.label(k)

def arrive_now(a, vb=12):
    a("s_waitcnt vmcnt(0)")
    a("s_barrier")
    arrive_issue(a, vb)


def build_full(cfg, path):
    cfg = dict(cfg)
    roles = cfg.get("roles", {"C","K","V","Q","O","F","E","R","P"})
    a = Asm()
    bulk.TRACE = cfg.get("trace", 0)
    chain.POLL_DEPTH = cfg.get("depth", 2)
    global FORCE_BAD
    FORCE_BAD = bool(cfg.get("force_bad"))
    bulk.NOMFMA = bool(cfg.get("nomfma")); bulk.NODMA = bool(cfg.get("nodma"))
    entry(a)
    bulk.trace_pt(a, 100)
    a(f"s_mov_b32 s{S_MODE}, 1")
    bulk.own_flag_intra(a)
    a(f"s_lshl_b32 s63, s2, 7")
    a(f"s_add_u32 s63, s63, {FLX}")
    a(f"s_cmp_lt_u32 s{S_IDX}, 12")
    a(f"s_cselect_b32 s{bulk.S_FLAG}, s{bulk.S_FLAG}, s63")
    a(f"s_lshl_b32 s63, s{S_GRP}, 7")
    a(f"s_lshl_b32 s64, s{S_IDX}, 2")
    a(f"s_add_u32 s63, s63, s64")
    a(f"s_add_u32 s63, s63, {FLQ - 80}")
    a(f"s_lshr_b32 s64, s{S_IDX}, 2")
    a(f"s_cmp_eq_u32 s64, 5")
    a(f"s_cselect_b32 s{bulk.S_FLAG}, s63, s{bulk.S_FLAG}")
    bulk.flag_init(a, bulk.S_FLAG)
    a(f"s_mov_b32 s{S_NEAR}, 0")
    for lim, lab in ((12, "L_chain"), (16, "L_k"), (20, "L_v"), (24, "L_q"), (28, "L_o")):
        a(f"s_cmp_lt_u32 s{S_IDX}, {lim}")
        a(f"s_cbranch_scc1 {lab}")
    a(f"s_cmp_lt_u32 s{S_IDX}, 30")
    a(f"s_cbranch_scc1 L_r")
    a(f"s_cmp_eq_u32 s{S_IDX}, 30")
    a(f"s_cbranch_scc1 L_p")
    a.label("L_idle")
    bulk.gen_e_init(a, DSR)
    arrive_now(a)
    bulk.CAL_WAIT = "C" in roles
    bulk.gen_calib(a, DSR, 0)
    wait_go(a, sleep=16, can_master=True)
    bulk.gen_calib(a, DSR, 1)
    a.label("L_exit")
    a("s_endpgm")
    def role(lab, name, init, pre, main, sleep=8, late=False):
        a.label(lab)
        on = name in roles
        if init is not None or not on:
            if init: init()
            arrive_now(a)
            bulk.HOOK = None
        else:
            bulk.HOOK = lambda: arrive_issue(a, 12)
        if not on:
            wait_go(a, sleep=16, can_master=(name == "O"))
            a("s_endpgm"); return
        if late:
            wait_go(a, sleep=sleep, can_master=(name == "O"))
            if not cfg.get("nowait") and cfg.get("lateq", 1):
                a(f"s_and_b32 s60, s{S_IDX}, 3")
                bulk.kv_flag_addr(a, 10)
                a("s_mov_b32 s77, 0")
                a("s_mov_b32 s75, 1")
                bulk.flag_wait_w0(a, 10, 75, 77, 2, sleep=8, ahead=0)
                a("s_barrier")
        bulk.trace_pt(a, 101, 16)
        pre()
        bulk.trace_pt(a, 102, 16)
        if not late: wait_go(a, sleep=sleep)
        bulk.trace_pt(a, 103, 16)
        if cfg.get("force_safe"): a(f"s_mov_b32 s{S_MODE}, 1")
        main()
    ln = lambda: bulk.gen_ln(a)
    def kvpre(isV):
        a(f"s_sub_u32 s15, s2, 96")
        a(f"s_lshl_b32 s63, s15, 7")
        a(f"s_add_u32 s63, s63, {FL2}")
        bulk.flag_init(a, 63)
        bulk.gen_kv_pre(a, cfg, isV)
    role("L_k", "K", None, lambda: kvpre(False), lambda: bulk.gen_kv_main(a, cfg, False, "L_ph2"), 2)
    role("L_v", "V", None, lambda: kvpre(True), lambda: bulk.gen_kv_main(a, cfg, True, "L_ph2"), 2)
    role("L_q", "Q", ln, lambda: bulk.gen_q_pre(a, cfg), lambda: bulk.gen_q_main(a, cfg), late=True)
    role("L_o", "O", ln, lambda: bulk.gen_o_pre(a, cfg), lambda: bulk.gen_o_main(a, cfg), late=True)
    role("L_r", "R", lambda: bulk.gen_relay_init(a, "R"), lambda: None, lambda: bulk.gen_relay_main(a, cfg), 8)
    role("L_p", "P", lambda: bulk.gen_relay_init(a, "P"), lambda: None, lambda: bulk.gen_pref_main(a, cfg), 2)
    a.label("L_ph2")
    bulk.HOOK = None
    if "F" not in roles:
        a("s_endpgm")
    else:
        a(f"s_lshl_b32 s{bulk.S_FLAG}, s15, 7")
        a(f"s_add_u32 s{bulk.S_FLAG}, s{bulk.S_FLAG}, {FL2}")
        if bulk.TRACE: a(f"s_add_u32 s2, s15, 256")
        n1 = 12*bulk.NF1; n2 = n1 + 5*bulk.NF2
        a(f"s_cmp_lt_u32 s15, {n1}")
        a("s_cbranch_scc0 L_nf1")
        a("s_mul_i32 s9, s15, 43")
        a("s_lshr_b32 s9, s9, 9")
        a("s_mul_i32 s60, s9, 12")
        a("s_sub_u32 s60, s15, s60")
        bulk.gen_f1_pre(a, cfg)
        bulk.gen_f1_main(a, cfg, "L_ph3")
        a.label("L_nf1")
        a(f"s_cmp_lt_u32 s15, {n2}")
        a("s_cbranch_scc0 L_ph3")
        a(f"s_sub_u32 s63, s15, {n1}")
        a("s_mul_i32 s9, s63, 52")
        a("s_lshr_b32 s9, s9, 8")
        a("s_mul_i32 s61, s9, 5")
        a("s_sub_u32 s61, s63, s61")
        bulk.gen_f2_pre(a, cfg)
        bulk.gen_f2_main(a, cfg, "L_ph3")
        a.label("L_ph3")
        if "E" not in roles:
            a("s_endpgm")
        else:
            a("s_sub_u32 s63, 63, s15")
            a(f"s_cmp_ge_u32 s63, {10*bulk.NE}")
            a("s_cbranch_scc1 L_exit")
            a("s_mul_i32 s9, s63, 26")
            a("s_lshr_b32 s9, s9, 8")
            a("s_mul_i32 s60, s9, 10")
            a("s_sub_u32 s60, s63, s60")
            bulk.gen_e_main(a, cfg)
    if not cfg.get("nowait"):
        def kv_setup(a):
            a(f"s_lshl_b32 s63, s{S_GRP}, 7")
            a(f"s_lshl_b32 s64, s60, 3")
            a(f"s_add_u32 s63, s63, s64")
            a(f"s_add_u32 s63, s63, {KVR}")
            a(f"v_min_u32 v0, 1, v1")
            a(f"v_lshlrev_b32 v0, 2, v0")
            a(f"v_add_u32 v0, s63, v0")
            a(f"s_mov_b32 s86, 0")
        def wait_kv(a, sseg):
            a(f"s_add_u32 s87, s{sseg}, 1")
            bulk.flag_wait(a, 0, 87, 86, 40, sleep=1, ahead=3)
        cfg["kv_setup"] = kv_setup; cfg["wait_kv"] = wait_kv
    cfg["dsr"] = DSR
    cfg["pub"] = lambda a, sval: bulk.flag_set(a, bulk.S_FLAG, sval, True, 40, wave=4)
    def cpre():
        chain.gen_chain_init(a, cfg)
        chain.gen_chain_pre(a, cfg)
        chain.gen_weight_load(a, bulk.HOOK)
        if cfg.get("warm", 1): bulk.code_warm(a, "L_chain_code", 12288)
    role("L_chain", "C", None, cpre, lambda: chain.gen_chain_main(a, cfg), 2)
    open(path, "w").write(HEADER.format(k=KNAME) + a.text() + FOOTER.format(k=KNAME))

if __name__ == "__main__":
    import sys, subprocess
    names = []
    def B(n, **kw):
        build_full(dict(kw), f"dev/{n}.s"); names.append(n)
        subprocess.run(["python3", "build.py", f"dev/{n}.s", KNAME, "14"])
    import json
    specs = json.loads(sys.argv[1]) if len(sys.argv) > 1 else {}
    for n, kw in specs.items():
        if "roles" in kw: kw["roles"] = set(kw["roles"])
        B(n, **kw)
```
